```python
import torch

def _softmax(x, axis=-1):
    return torch.softmax(x, dim=axis)
def _gelu(x):
    return torch.nn.functional.gelu(x, approximate="tanh")
def _silu(x):
    return torch.nn.functional.silu(x)
def _sigmoid(x):
    return torch.sigmoid(x)
def _layernorm(x, axis=-1, eps=1e-5):
    m = x.mean(dim=axis, keepdim=True)
    v = x.var(dim=axis, keepdim=True, unbiased=False)
    return (x - m) / torch.sqrt(v + eps)
def _scatter_add(tgt, idx, src, axis=0):
    return tgt.clone().index_add_(axis, idx, src)
def _segment_sum(src, seg, n):
    out = torch.zeros((n,) + src.shape[1:], dtype=src.dtype)
    return out.index_add_(0, seg, src)
def _pad(x, pw):
    flat = tuple(v for pair in reversed(pw) for v in pair)
    return torch.nn.functional.pad(x, flat)

kernel_name = 'concat_heads__gqa_block_cached__gqa_block_cached__near_ridge'

def setup_inputs():

    _w = (lambda a: (lambda t: t.to(torch.bfloat16) if t.is_floating_point() else t)(torch.as_tensor(a)))
    def _A_setup():
        B, Sq, D = 8, 128, 640
        Hq, Hkv, Sk, Dh = 32, 32, 512, 192
        assert Hq % Hkv == 0, (Hq, Hkv)
        return {
            "x": _w((lambda *s: torch.randn(*s, dtype=torch.bfloat16) * 0.8)(B, Sq, D)),
            "k_cache": _w((lambda *s: torch.randn(*s, dtype=torch.bfloat16) * 0.8)(B, Hkv, Sk, Dh)),
            "v_cache": _w((lambda *s: torch.randn(*s, dtype=torch.bfloat16) * 0.05)(B, Hkv, Sk, Dh)),
            "wq": _w((lambda *s: torch.randn(*s, dtype=torch.bfloat16) * 0.8)(D, Hq * Dh) * (D ** -0.5)),
            "wo": _w((lambda *s: torch.randn(*s, dtype=torch.bfloat16) * 0.05)(Hq * Dh, D) * ((Hq * Dh) ** -0.5)),
        }
    _A_in = _A_setup()

    def _B_setup():
        B, Sq, D = 8, 128, 640
        Hq, Hkv, Sk, Dh = 32, 32, 512, 192
        assert Hq % Hkv == 0, (Hq, Hkv)
        return {
            "x": _w((lambda *s: torch.randn(*s, dtype=torch.bfloat16) * 0.8)(B, Sq, D)),
            "k_cache": _w((lambda *s: torch.randn(*s, dtype=torch.bfloat16) * 0.8)(B, Hkv, Sk, Dh)),
            "v_cache": _w((lambda *s: torch.randn(*s, dtype=torch.bfloat16) * 0.05)(B, Hkv, Sk, Dh)),
            "wq": _w((lambda *s: torch.randn(*s, dtype=torch.bfloat16) * 0.8)(D, Hq * Dh) * (D ** -0.5)),
            "wo": _w((lambda *s: torch.randn(*s, dtype=torch.bfloat16) * 0.05)(Hq * Dh, D) * ((Hq * Dh) ** -0.5)),
        }
    _B_in = _B_setup()

    return {
        "A_x": _A_in["x"],
        "A_k_cache": _A_in["k_cache"],
        "A_v_cache": _A_in["v_cache"],
        "A_wq": _A_in["wq"],
        "A_wo": _A_in["wo"],
        "B_x": _B_in["x"],
        "B_k_cache": _B_in["k_cache"],
        "B_v_cache": _B_in["v_cache"],
        "B_wq": _B_in["wq"],
        "B_wo": _B_in["wo"],
    }

def reference(A_x, A_k_cache, A_v_cache, A_wq, A_wo, B_x, B_k_cache, B_v_cache, B_wq, B_wo):
    def _A_ref(x, k_cache, v_cache, wq, wo):
        B, Sq, D = x.shape
        Hq, Dh = 32, 192
        Hkv = k_cache.shape[1]
        rep = Hq // Hkv
        q = (lambda x, *d: x.permute(*d))((x @ wq).reshape(B, Sq, Hq, Dh), 0, 2, 1, 3)
        k = (lambda x, n, axis: torch.repeat_interleave(x, n, dim=axis))(k_cache, rep, axis=1)
        v = (lambda x, n, axis: torch.repeat_interleave(x, n, dim=axis))(v_cache, rep, axis=1)
        scores = torch.einsum("bhqd,bhkd->bhqk", q, k) * (Dh ** -0.5)
        p = _softmax(scores, axis=-1)
        o = torch.einsum("bhqk,bhkd->bhqd", p, v)
        return (lambda x, *d: x.permute(*d))(o, 0, 2, 1, 3).reshape(B, Sq, Hq * Dh) @ wo

    def _B_ref(x, k_cache, v_cache, wq, wo):
        B, Sq, D = x.shape
        Hq, Dh = 32, 192
        Hkv = k_cache.shape[1]
        rep = Hq // Hkv
        q = (lambda x, *d: x.permute(*d))((x @ wq).reshape(B, Sq, Hq, Dh), 0, 2, 1, 3)
        k = (lambda x, n, axis: torch.repeat_interleave(x, n, dim=axis))(k_cache, rep, axis=1)
        v = (lambda x, n, axis: torch.repeat_interleave(x, n, dim=axis))(v_cache, rep, axis=1)
        scores = torch.einsum("bhqd,bhkd->bhqk", q, k) * (Dh ** -0.5)
        p = _softmax(scores, axis=-1)
        o = torch.einsum("bhqk,bhkd->bhqd", p, v)
        return (lambda x, *d: x.permute(*d))(o, 0, 2, 1, 3).reshape(B, Sq, Hq * Dh) @ wo

    a = _A_ref(A_x, A_k_cache, A_v_cache, A_wq, A_wo)
    b = _B_ref(B_x, B_k_cache, B_v_cache, B_wq, B_wo)
    return torch.concatenate([a, b], axis=-1)
```

```python
import sys
NAME = "concat_heads__gqa_block_cached__gqa_block_cached__near_ridge"
OUT = sys.argv[1] if len(sys.argv) > 1 else f"cdna_kernels/{NAME}.s"
OPT = dict(a.split("=") for a in sys.argv[2:])
DEBUG = int(OPT.get("debug", 0))
ST_FLAGS = OPT.get("st", "")
KV_FLAGS = OPT.get("kv", "")
RD_FLAGS = OPT.get("rd", "")

L = []
def e(s): L.append("    " + s)
def lab(s): L.append(s + ":")
def cm(s): L.append("    ; " + s)

SLOT = 24576; NSLOT = 5; XA = SLOT * NSLOT
LDS_BYTES = XA + 32768

ACC = 160
QF = 112
S = 96
P = 88
AF = 64
vLANE, vHF, vT0, vT1, vT2, vT3 = 1, 2, 3, 4, 5, 6
vKREL, vVREL, vOREL = 8, 9, 10
vA = 12
vD = 16
vW = 20
vO = 24
vXO = 28
vXA = 32
vM, vMT, vL0, vL1, vMX, vMX2, vAL = 36, 37, 38, 39, 40, 41, 42
vST = 43
vEX = 44
vEXR = 45
sK, sV, sWQ, sWO, sX, sWS = 8, 12, 16, 20, 24, 28
sCUR, sPREV, sWOFS, sW, sHALF, sQG = 32, 33, 34, 35, 36, 37
sCNT, sSOFF, sSOFF2, sXOFF, sC, sTMP, sTMP2, sXM0 = 38, 39, 40, 41, 42, 43, 44, 45
sSTO = 46
sPTR = 48
sBLK, sB, sHP, sH = 76, 77, 78, 79

def vr(b, n): return f"v[{b}:{b+n-1}]"
def sr(b, n=4): return f"s[{b}:{b+n-1}]"

class VM:
    def __init__(s): s.ops = []
    def issue(s, tag, n=1): s.ops += [tag] * n
    def need(s, tags):
        last = max(i for i, t in enumerate(s.ops) if t in tags)
        for t in tags: assert t in s.ops, t
        return len(s.ops) - 1 - last
vm = VM()

def rotate_slot():
    e(f"s_mov_b32 s{sPREV}, s{sCUR}")
    e(f"s_add_u32 s{sCUR}, s{sCUR}, {SLOT}")
    e(f"s_cmp_eq_u32 s{sCUR}, {SLOT*NSLOT}")
    e(f"s_cselect_b32 s{sCUR}, 0, s{sCUR}")

def dma3(srd, v0, soff, flags=""):
    return [f"buffer_load_dwordx4 v{v0+j}, {sr(srd)}, s{soff} offen offset:{1024*j} lds {flags}".rstrip() for j in range(3)]

def set_m0_prev():
    e(f"s_add_u32 m0, s{sPREV}, s{sWOFS}")

def load_ops(kind):
    if kind is None: return []
    ops = [f"s_add_u32 m0, s{sPREV}, s{sWOFS}", "s_nop 0"]
    if kind == "W":
        ops += dma3(sWQ, vW, sSOFF) + [f"s_add_u32 s{sSOFF}, s{sSOFF}, {32*12288}"]
    elif kind == "K":
        ops += dma3(sK, vD, sSOFF2, KV_FLAGS)
    elif kind == "V":
        ops += dma3(sV, vD, sSOFF2, KV_FLAGS) + [f"s_add_u32 s{sSOFF2}, s{sSOFF2}, 12288"]
    elif kind[0] == "O":
        rho = int(kind[1])
        ops += dma3(sWO, vO, sSOFF)
        ops += [f"s_add_u32 s{sSOFF}, s{sSOFF}, {96*1280}"] if rho < 3 else [f"s_sub_u32 s{sSOFF}, s{sSOFF}, {3*96*1280-256}"]
    return ops

def x_ops(xslot):
    return [f"s_add_u32 m0, s{sXM0}, {xslot*16384}", "s_nop 0",
            f"buffer_load_dwordx4 v{vXO}, {sr(sX)}, s{sXOFF} offen lds",
            f"buffer_load_dwordx4 v{vXO+1}, {sr(sX)}, s{sXOFF} offen offset:1024 lds",
            f"s_add_u32 s{sXOFF}, s{sXOFF}, 128"]

def step_head(n):
    e(f"s_waitcnt vmcnt({n})")
    e("s_barrier")
    rotate_slot()

def mfma_stream(reads, mfmas, extra, pre_lgkm=0, depth=6):
    n = len(mfmas)
    per = len(reads[0])
    for m in range(min(depth, n)):
        for r in reads[m]: e(r)
    extra = list(extra)
    for m in range(n):
        outstanding_after = per * (min(m + depth, n) - m - 1)
        e(f"s_waitcnt lgkmcnt({outstanding_after})")
        e(mfmas[m])
        if m + depth < n:
            for r in reads[m + depth]: e(r)
        k = 0
        while extra and k < 3:
            x = extra.pop(0); e(x); k += 1
            if x.startswith("buffer_"): break
    for x in extra: e(x)

def tr_addrs(rel):
    e(f"v_add_u32 v{vA}, s{sCUR}, v{rel}")
    e(f"v_xor_b32 v{vA+1}, 16, v{vA}")
    e(f"v_xor_b32 v{vA+2}, 64, v{vA}")
    e(f"v_xor_b32 v{vA+3}, 0x50, v{vA}")
def tr_reads(m, v, t):
    d = AF + 4 * (m % 6)
    return [f"ds_read_b64_tr_b16 {vr(d+2*q,2)}, v{vA + q + 2*(t&1)} offset:{128*(t>>1) + 6144*v + 1536*q}" for q in range(2)]

def q_step(par, n, ld, xld):
    step_head(n)
    tr_addrs(vVREL)
    if par == 0:
        pass
    reads, mf = [], []
    for v in range(2):
        for t in range(6):
            m = 6 * v + t
            reads.append(tr_reads(m, v, t))
            a = ACC + 16 * t
            mf.append(f"v_mfma_f32_32x32x16_bf16 {vr(a,16)}, {vr(AF+4*(m%6),4)}, {vr(S+4*(2*par+v),4)}, {vr(a,16)}")
    extra = (x_ops(xld) if xld is not None else []) + load_ops(ld)
    return reads, mf, extra

def emit_q_step(par, xs, n, ld, xld):
    reads, mf, extra = q_step(par, n, ld, xld)
    if par == 0:
        for s_ in range(4):
            e(f"ds_read_b128 {vr(S+4*s_,4)}, v{vXA+s_} offset:{xs*16384}")
        e("s_waitcnt lgkmcnt(3)")
    mfma_stream(reads, mf, extra)

def emit_k_step(n, ld, tag):
    step_head(n)
    e(f"v_add_u32 v{vA}, s{sCUR}, v{vKREL}")
    for m in range(1, 4): e(f"v_xor_b32 v{vA+m}, {32*m}, v{vA}")
    reads, mf = [], []
    for u in range(12):
        d = AF + 4 * (u % 6)
        reads.append([f"ds_read_b128 {vr(d,4)}, v{vA+(u&3)} offset:{128*(u>>2)}"])
        c = "0" if u == 0 else vr(S, 16)
        mf.append(f"v_mfma_f32_32x32x16_bf16 {vr(S,16)}, {vr(d,4)}, {vr(QF+4*u,4)}, {c}")
    mfma_stream(reads, mf, load_ops(ld))
    e("s_nop 15")
    e(f"v_max3_f32 v{vMX}, v{S}, v{S+1}, v{S+2}")
    for k in range(6): e(f"v_max3_f32 v{vMX}, v{vMX}, v{S+3+2*k}, v{S+4+2*k}")
    e(f"v_max_f32 v{vMX}, v{vMX}, v{S+15}")
    e(f"v_mov_b32 v{vMX2}, v{vMX}")
    e("s_nop 1")
    e(f"v_permlane32_swap_b32 v{vMX}, v{vMX2}")
    e("s_nop 1")
    e(f"v_max_f32 v{vMX}, v{vMX}, v{vMX2}")
    e(f"v_mul_f32 v{vMX}, s{sC}, v{vMX}")
    e(f"v_cmp_gt_f32 vcc, v{vMX}, v{vMT}")
    e(f"s_cbranch_vccz L_nors_{tag}")
    e(f"v_max_f32 v{vMX}, v{vMX}, v{vM}")
    e(f"v_sub_f32 v{vAL}, v{vM}, v{vMX}")
    e(f"v_exp_f32 v{vAL}, v{vAL}")
    e(f"v_mov_b32 v{vM}, v{vMX}")
    e(f"v_add_f32 v{vMT}, 8.0, v{vMX}" if False else f"v_add_f32 v{vMT}, s{sTMP2}, v{vMX}")
    e(f"v_mul_f32 v{vL0}, v{vL0}, v{vAL}")
    e(f"v_mul_f32 v{vL1}, v{vL1}, v{vAL}")
    for r in range(96): e(f"v_mul_f32 v{ACC+r}, v{ACC+r}, v{vAL}")
    lab(f"L_nors_{tag}")
    for r in range(16): e(f"v_fma_f32 v{S+r}, v{S+r}, s{sC}, -v{vM}")
    for r in range(16): e(f"v_exp_f32 v{S+r}, v{S+r}")
    for k in range(8):
        e(f"v_cvt_pk_bf16_f32 v{P+k}, v{S+2*k}, v{S+2*k+1}")
        e(f"v_add_f32 v{vL0}, v{vL0}, v{S+2*k}")
        e(f"v_add_f32 v{vL1}, v{vL1}, v{S+2*k+1}")

def emit_v_step(n, ld):
    step_head(n)
    tr_addrs(vVREL)
    reads, mf = [], []
    for v in range(2):
        for t in range(6):
            m = 6 * v + t
            reads.append(tr_reads(m, v, t))
            a = ACC + 16 * t
            mf.append(f"v_mfma_f32_32x32x16_bf16 {vr(a,16)}, {vr(AF+4*(m%6),4)}, {vr(P+4*v,4)}, {vr(a,16)}")
    mfma_stream(reads, mf, load_ops(ld))

OA = QF
OP = QF + 32
F = ACC
def emit_o_step(rho, n, ld):
    step_head(n)
    e(f"v_add_u32 v{vA}, s{sCUR}, v{vOREL}")
    e(f"v_xor_b32 v{vA+1}, 64, v{vA}")
    reads, mf = [], []
    for ee in range(6):
        for tn in range(2):
            m = 2 * ee + tn
            d = AF + 4 * (m % 6)
            reads.append([f"ds_read_b64_tr_b16 {vr(d+2*q,2)}, v{vA+tn} offset:{4096*ee+1024*q}" for q in range(2)])
            a = OA + 16 * tn
            c = "0" if (rho == 0 and ee == 0) else vr(a, 16)
            mf.append(f"v_mfma_f32_32x32x16_bf16 {vr(a,16)}, {vr(d,4)}, {vr(F+4*(6*rho+ee),4)}, {c}")
    mfma_stream(reads, mf, load_ops(ld))
    if rho == 3:
        e("s_nop 15")
        for k in range(16): e(f"v_cvt_pk_bf16_f32 v{OP+k}, v{OA+2*k}, v{OA+2*k+1}")
        for k in range(4):
            e(f"buffer_store_dwordx4 {vr(OP+4*k,4)}, v{vST}, {sr(sWS)}, s{sSTO} offen offset:{1024*k} {ST_FLAGS}".rstrip())
        e(f"s_add_u32 s{sSTO}, s{sSTO}, 8192")

def srd(d, ptr, off_s, nbytes):
    e(f"s_add_u32 s{d}, s{ptr}, s{off_s}")
    e(f"s_addc_u32 s{d+1}, s{ptr+1}, 0")
    e(f"s_and_b32 s{d+1}, s{d+1}, 0xffff")
    e(f"s_mov_b32 s{d+2}, {nbytes}" if isinstance(nbytes, int) else f"s_mov_b32 s{d+2}, s{nbytes[0]}")
    e(f"s_mov_b32 s{d+3}, 0x20000")

def swz(dst, r, tmp):
    e(f"v_bfe_u32 v{dst}, v{r}, 2, 2")
    e(f"v_bfe_u32 v{tmp}, v{r}, 1, 1")
    e(f"v_lshl_or_b32 v{dst}, v{tmp}, 2, v{dst}")

def kernel1():
    K1 = "attn_kernel"
    L.append(f".globl {K1}\n.p2align 8\n.type {K1},@function\n{K1}:")
    e("s_cmp_ge_u32 s2, 256")
    e("s_cbranch_scc1 L_end")
    e(f"s_load_dwordx16 s[{sPTR}:{sPTR+15}], s[0:1], 0")
    e(f"s_load_dwordx8 s[{sPTR+16}:{sPTR+23}], s[0:1], 64")
    e(f"s_load_dwordx2 s[{sPTR+24}:{sPTR+25}], s[0:1], 96")
    e(f"v_lshrrev_b32 v{vT0}, 6, v0")
    e(f"v_and_b32 v{vLANE}, 63, v0")
    e(f"v_readfirstlane_b32 s{sW}, v{vT0}")
    e(f"v_lshrrev_b32 v{vHF}, 5, v{vLANE}")
    e(f"s_bfe_u32 s{sBLK}, s2, 0x10002")
    e(f"s_bfe_u32 s{sB}, s2, 0x30003")
    e(f"s_and_b32 s{sHP}, s2, 3")
    e(f"s_lshl_b32 s{sHP}, s{sHP}, 2")
    e(f"s_lshr_b32 s{sTMP}, s2, 6")
    e(f"s_add_u32 s{sHP}, s{sHP}, s{sTMP}")
    e(f"s_lshr_b32 s{sHALF}, s{sW}, 2")
    e(f"s_and_b32 s{sQG}, s{sW}, 3")
    e(f"s_lshl_b32 s{sH}, s{sHP}, 1")
    e(f"s_add_u32 s{sH}, s{sH}, s{sHALF}")
    e(f"s_mul_i32 s{sWOFS}, s{sW}, 3072")
    e(f"s_lshl_b32 s{sXM0}, s{sW}, 11")
    e(f"s_add_u32 s{sXM0}, s{sXM0}, {XA}")
    e(f"s_mov_b32 s{sC}, 0x{f32hex(192**-0.5 * 1.4426950408889634)}")
    e(f"s_mov_b32 s{sTMP2}, 0x41000000")
    e(f"s_mul_i32 s{sTMP}, s{sQG}, 24")
    for j in range(3):
        e(f"v_lshrrev_b32 v{vT0}, 3, v{vLANE}")
        e(f"v_add_u32 v{vT0}, s{sTMP}, v{vT0}")
        if j: e(f"v_add_u32 v{vT0}, {8*j}, v{vT0}")
        e(f"v_mul_u32_u24 v{vT1}, 43, v{vT0}")
        e(f"v_lshrrev_b32 v{vT1}, 7, v{vT1}")
        swz(vT2, vT1, vT3)
        e(f"v_and_b32 v{vT3}, 7, v{vLANE}")
        e(f"v_xor_b32 v{vT2}, v{vT2}, v{vT3}")
        e(f"v_lshlrev_b32 v{vT2}, 4, v{vT2}")
        e(f"v_lshl_add_u32 v{vD+j}, v{vT0}, 7, v{vT2}")
        if j: e(f"v_subrev_u32 v{vD+j}, {1024*j}, v{vD+j}")
        e(f"v_mul_u32_u24 v{vT1}, {12288-384}, v{vT1}")
        e(f"v_add_u32 v{vW+j}, v{vD+j}, v{vT1}")
    e(f"v_lshrrev_b32 v{vT0}, 4, v{vLANE}")
    e(f"v_lshlrev_b32 v{vT1}, 2, v{vT0}")
    e(f"v_and_b32 v{vT2}, 15, v{vLANE}")
    e(f"v_xor_b32 v{vT1}, v{vT1}, v{vT2}")
    e(f"v_lshlrev_b32 v{vT1}, 4, v{vT1}")
    e(f"s_mul_i32 s{sTMP}, s{sW}, 12")
    e(f"v_add_u32 v{vT0}, s{sTMP}, v{vT0}")
    e(f"v_mul_u32_u24 v{vT0}, 1280, v{vT0}")
    e(f"v_add_u32 v{vO}, v{vT0}, v{vT1}")
    e(f"v_add_u32 v{vO+1}, {4*1280-1024}, v{vO}")
    e(f"v_add_u32 v{vO+2}, {2*(4*1280-1024)}, v{vO}")
    for pj in range(2):
        e(f"v_lshrrev_b32 v{vT0}, 4, v{vLANE}")
        if pj: e(f"v_add_u32 v{vT0}, 4, v{vT0}")
        e(f"v_and_b32 v{vT1}, 7, v{vLANE}")
        e(f"v_xor_b32 v{vT1}, v{vT1}, v{vT0}")
        e(f"v_lshlrev_b32 v{vT1}, 4, v{vT1}")
        e(f"s_lshl_b32 s{sTMP}, s{sW}, 4")
        e(f"v_lshrrev_b32 v{vT0}, 3, v{vLANE}")
        e(f"v_add_u32 v{vT0}, s{sTMP}, v{vT0}")
        e(f"v_mul_u32_u24 v{vT0}, 1280, v{vT0}")
        e(f"v_add_u32 v{vXO+pj}, v{vT0}, v{vT1}")
        if pj: e(f"v_add_u32 v{vXO+pj}, {8*1280-1024}, v{vXO+pj}")
    e("s_waitcnt lgkmcnt(0)")
    e(f"s_cmp_eq_u32 s{sBLK}, 0")
    for k in range(5):
        e(f"s_cselect_b64 s[{sPTR+2*k}:{sPTR+2*k+1}], s[{sPTR+2*k}:{sPTR+2*k+1}], s[{sPTR+10+2*k}:{sPTR+11+2*k}]")
    e(f"s_mul_i32 s{sTMP}, s{sB}, 163840"); srd(sX, sPTR, sTMP, 163840)
    e(f"s_mul_i32 s{sTMP}, s{sH}, 384")
    e(f"s_sub_u32 s{sCNT}, {640*12288}, s{sTMP}"); srd(sWQ, sPTR+6, sTMP, (sCNT,))
    e(f"s_mov_b32 s{sSOFF}, 0"); e(f"s_mov_b32 s{sXOFF}, 0"); e(f"s_mov_b32 s{sSOFF2}, 0")
    for i in range(4):
        e(f"s_mov_b32 s{sPREV}, {SLOT*i}")
        if i & 1:
            for x in x_ops(i >> 1): e(x)
            vm.issue(f"x{i>>1}", 2)
        for x in load_ops("W"): e(x)
        vm.issue(f"t{i}", 3)
    e(f"s_mov_b32 s{sCUR}, {SLOT*(NSLOT-1)}")
    e(f"s_lshl_b32 s{sTMP}, s{sB}, 5")
    e(f"s_add_u32 s{sTMP}, s{sTMP}, s{sH}")
    e(f"s_mul_i32 s{sTMP}, s{sTMP}, 196608")
    srd(sK, sPTR+2, sTMP, 196608); srd(sV, sPTR+4, sTMP, 196608)
    e(f"s_mul_i32 s{sTMP}, s{sHP}, 491520"); srd(sWO, sPTR+8, sTMP, 491520)
    e(f"s_lshl_b32 s{sTMP}, s{sBLK}, 3"); e(f"s_add_u32 s{sTMP}, s{sTMP}, s{sB}")
    e(f"s_lshl_b32 s{sTMP}, s{sTMP}, 4"); e(f"s_add_u32 s{sTMP}, s{sTMP}, s{sHP}")
    e(f"s_mul_i32 s{sTMP}, s{sTMP}, 163840")
    e(f"s_mul_i32 s{sCNT}, s{sQG}, 40960"); e(f"s_add_u32 s{sTMP}, s{sTMP}, s{sCNT}")
    srd(sWS, sPTR+24, sTMP, 40960)
    e(f"s_lshl_b32 s{sSTO}, s{sHALF}, 12")
    e(f"v_lshlrev_b32 v{vST}, 4, v{vLANE}")
    e(f"s_mul_i32 s{sTMP}, s{sHALF}, 12288")
    e(f"v_and_b32 v{vT0}, 0x13, v{vLANE}")
    e(f"v_bfe_u32 v{vT1}, v{vLANE}, 2, 1"); e(f"v_lshl_or_b32 v{vT0}, v{vT1}, 3, v{vT0}")
    e(f"v_bfe_u32 v{vT1}, v{vLANE}, 3, 1"); e(f"v_lshl_or_b32 v{vT0}, v{vT1}, 2, v{vT0}")
    swz(vT1, vT0, vT2)
    e(f"v_xor_b32 v{vT1}, v{vT1}, v{vHF}")
    e(f"v_lshlrev_b32 v{vT1}, 4, v{vT1}")
    e(f"v_mul_u32_u24 v{vT0}, 384, v{vT0}")
    e(f"v_add3_u32 v{vKREL}, v{vT0}, v{vT1}, s{sTMP}")
    e(f"v_bfe_u32 v{vT0}, v{vLANE}, 2, 2")
    e(f"v_lshl_add_u32 v{vT0}, v{vHF}, 3, v{vT0}")
    e(f"v_mul_u32_u24 v{vT0}, 384, v{vT0}")
    e(f"v_bfe_u32 v{vT1}, v{vLANE}, 3, 1"); e(f"v_lshl_add_u32 v{vT0}, v{vT1}, 6, v{vT0}")
    e(f"v_bfe_u32 v{vT1}, v{vLANE}, 4, 1"); e(f"v_xor_b32 v{vT1}, v{vT1}, v{vHF}"); e(f"v_lshl_add_u32 v{vT0}, v{vT1}, 5, v{vT0}")
    e(f"v_and_b32 v{vT1}, 1, v{vLANE}"); e(f"v_lshl_add_u32 v{vT0}, v{vT1}, 4, v{vT0}")
    e(f"v_bfe_u32 v{vT1}, v{vLANE}, 1, 1"); e(f"v_lshl_add_u32 v{vT0}, v{vT1}, 3, v{vT0}")
    e(f"v_add_u32 v{vVREL}, s{sTMP}, v{vT0}")
    e(f"v_bfe_u32 v{vT0}, v{vLANE}, 2, 2")
    e(f"v_lshlrev_b32 v{vT2}, 2, v{vT0}")
    e(f"v_lshl_add_u32 v{vT0}, v{vHF}, 3, v{vT0}")
    e(f"v_lshlrev_b32 v{vT0}, 8, v{vT0}")
    e(f"v_bfe_u32 v{vT1}, v{vLANE}, 4, 1"); e(f"v_lshlrev_b32 v{vT1}, 1, v{vT1}")
    e(f"v_and_b32 v{vT3}, 1, v{vLANE}"); e(f"v_or_b32 v{vT1}, v{vT1}, v{vT3}")
    e(f"s_lshl_b32 s{sTMP}, s{sHALF}, 3")
    e(f"v_or_b32 v{vT1}, s{sTMP}, v{vT1}")
    e(f"v_xor_b32 v{vT1}, v{vT1}, v{vT2}")
    e(f"v_lshl_add_u32 v{vT0}, v{vT1}, 4, v{vT0}")
    e(f"v_bfe_u32 v{vT1}, v{vLANE}, 1, 1"); e(f"v_lshl_add_u32 v{vOREL}, v{vT1}, 3, v{vT0}")
    e(f"v_and_b32 v{vT0}, 31, v{vLANE}")
    e(f"v_bfe_u32 v{vT1}, v{vLANE}, 1, 3")
    e(f"v_xor_b32 v{vT1}, v{vT1}, v{vHF}")
    e(f"v_lshlrev_b32 v{vT1}, 4, v{vT1}")
    e(f"v_lshl_add_u32 v{vT0}, v{vT0}, 7, v{vT1}")
    e(f"s_lshl_b32 s{sTMP}, s{sQG}, 12"); e(f"s_add_u32 s{sTMP}, s{sTMP}, {XA}")
    e(f"v_add_u32 v{vXA}, s{sTMP}, v{vT0}")
    for m in range(1, 4): e(f"v_xor_b32 v{vXA+m}, {32*m}, v{vXA}")
    e(f"v_add_u32 v{vEXR}, s{sTMP}, v{vST}")
    e(f"s_lshl_b32 s{sTMP}, s{sW}, 12"); e(f"s_add_u32 s{sTMP}, s{sTMP}, {XA}")
    e(f"v_add_u32 v{vEX}, s{sTMP}, v{vST}")
    for r in range(96): e(f"v_mov_b32 v{ACC+r}, 0")
    e(f"v_mov_b32 v{vM}, 0xf149f2ca"); e(f"v_mov_b32 v{vMT}, 0xf149f2ca")
    e(f"v_mov_b32 v{vL0}, 0"); e(f"v_mov_b32 v{vL1}, 0")

    kinds = ["W"] * 20 + ["K", "V"] * 16 + ["O0", "O1", "O2", "O3"] * 5
    NT = len(kinds)
    waits = []
    for i in range(NT):
        need = [f"t{i}"] + ([f"x{i//2}"] if i < 20 and i % 2 == 0 else [])
        waits.append(vm.need(need))
        if i < 20 and i % 2 == 1 and i // 2 + 2 <= 9: vm.issue(f"x{i//2+2}", 2)
        if i + 4 < NT: vm.issue(f"t{i+4}", 3)
        if kinds[i] == "O3": vm.issue("st", 4)
    def ldk(i): return kinds[i + 4] if i + 4 < NT else None
    def same(idx, stride, cnt):
        w = [waits[idx + stride * k] for k in range(cnt)]
        return min(w)
    cm("Q phase")
    e(f"s_mov_b32 s{sCNT}, 4")
    lab("L_q")
    for k in range(4):
        xs = (k >> 1) & 1
        emit_q_step(k & 1, xs, same(k, 4, 4), "W", xs if (k & 1) else None)
    e(f"s_sub_u32 s{sCNT}, s{sCNT}, 1"); e(f"s_cmp_lg_u32 s{sCNT}, 0"); e("s_cbranch_scc1 L_q")
    for i in range(16, 20):
        emit_q_step(i & 1, (i >> 1) & 1, waits[i], ldk(i), None)
    e("s_nop 15")
    for k in range(48): e(f"v_cvt_pk_bf16_f32 v{QF+k}, v{ACC+2*k}, v{ACC+2*k+1}")
    for r in range(96): e(f"v_mov_b32 v{ACC+r}, 0")
    if DEBUG == 1: dump(QF, 12)
    e(f"s_mov_b32 s{sSOFF}, 0")
    cm("attention phase")
    e(f"s_mov_b32 s{sCNT}, 14")
    lab("L_a")
    emit_k_step(same(20, 2, 14), "K", "a")
    emit_v_step(same(21, 2, 14), "V")
    e(f"s_sub_u32 s{sCNT}, s{sCNT}, 1"); e(f"s_cmp_lg_u32 s{sCNT}, 0"); e("s_cbranch_scc1 L_a")
    for i in range(48, 52, 2):
        emit_k_step(waits[i], ldk(i), f"b{i}")
        emit_v_step(waits[i + 1], ldk(i + 1))
    cm("normalise + exchange")
    e(f"v_add_f32 v{vL0}, v{vL0}, v{vL1}")
    e(f"v_mov_b32 v{vL1}, v{vL0}")
    e("s_nop 1")
    e(f"v_permlane32_swap_b32 v{vL0}, v{vL1}")
    e("s_nop 1")
    e(f"v_add_f32 v{vL0}, v{vL0}, v{vL1}")
    e(f"v_rcp_f32 v{vAL}, v{vL0}")
    e("s_nop 7")
    for r in range(96): e(f"v_mul_f32 v{ACC+r}, v{ACC+r}, v{vAL}")
    for k in range(48): e(f"v_cvt_pk_bf16_f32 v{QF+k}, v{ACC+2*k}, v{ACC+2*k+1}")
    if DEBUG == 2: dump(QF, 12)
    for rho in range(3):
        for f in range(4): e(f"ds_write_b128 v{vEX}, {vr(QF+16*rho+4*f,4)} offset:{1024*f}")
        e("s_waitcnt lgkmcnt(0)"); e("s_barrier")
        for f in range(4):
            e(f"ds_read_b128 {vr(F+16*rho+4*f,4)}, v{vEXR} offset:{1024*f}")
            e(f"ds_read_b128 {vr(F+48+16*rho+4*f,4)}, v{vEXR} offset:{16384+1024*f}")
        e("s_waitcnt lgkmcnt(0)")
        if rho < 2: e("s_barrier")
    cm("O phase")
    e(f"s_mov_b32 s{sCNT}, 4")
    lab("L_o")
    for rho in range(4):
        emit_o_step(rho, same(52 + rho, 4, 4), f"O{rho}")
    e(f"s_sub_u32 s{sCNT}, s{sCNT}, 1"); e(f"s_cmp_lg_u32 s{sCNT}, 0"); e("s_cbranch_scc1 L_o")
    for rho in range(4):
        emit_o_step(rho, waits[68 + rho], None)
    lab("L_end")
    e("s_endpgm")
    return K1

def dump(base, nfrag):
    e(f"s_lshl_b32 s{sTMP}, s2, 3"); e(f"s_add_u32 s{sTMP}, s{sTMP}, s{sW}")
    e(f"s_mul_i32 s{sTMP}, s{sTMP}, {nfrag*1024}")
    e(f"s_add_u32 s{sTMP}, s{sTMP}, 0x4000000")
    srd(sWS, sPTR+24, sTMP, nfrag*1024)
    for f in range(nfrag):
        e(f"s_mov_b32 s{sTMP}, {1024*f}")
        e(f"buffer_store_dwordx4 {vr(base+4*f,4)}, v{vST}, {sr(sWS)}, s{sTMP} offen")
    e("s_waitcnt vmcnt(0)")
    e("s_endpgm")

def kernel2():
    K2 = "reduce_kernel"
    L.append(f".globl {K2}\n.p2align 8\n.type {K2},@function\n{K2}:")
    e("s_cmp_ge_u32 s2, 640")
    e("s_cbranch_scc1 L_end2")
    e("s_load_dwordx2 s[4:5], s[0:1], 80")
    e("s_load_dwordx2 s[6:7], s[0:1], 96")
    e("s_mul_i32 s16, s2, 1639"); e("s_lshr_b32 s16, s16, 16")
    e("s_mul_i32 s17, s16, 40"); e("s_sub_u32 s17, s2, s17")
    e("v_lshrrev_b32 v1, 6, v0")
    e("s_nop 0")
    e("v_readfirstlane_b32 s18, v1")
    e("s_lshl_b32 s17, s17, 2")
    e("s_nop 1")
    e("s_add_u32 s17, s17, s18")
    e("v_and_b32 v2, 63, v0")
    e("v_lshlrev_b32 v3, 4, v2")
    e("s_mul_i32 s19, s16, 2621440")
    e("s_lshl_b32 s20, s17, 10"); e("s_add_u32 s19, s19, s20")
    e("s_waitcnt lgkmcnt(0)")
    e("s_add_u32 s8, s6, s19"); e("s_addc_u32 s9, s7, 0"); e("s_and_b32 s9, s9, 0xffff")
    e(f"s_mov_b32 s10, {15*163840+1024}"); e("s_mov_b32 s11, 0x20000")
    e("s_mov_b32 s21, 0")
    for hp in range(16):
        e(f"buffer_load_dwordx4 {vr(16+4*hp,4)}, v3, s[8:11], s21 offen {RD_FLAGS}".rstrip())
        if hp < 15: e("s_add_u32 s21, s21, 163840")
    e("s_mov_b32 s12, s4"); e("s_and_b32 s13, s5, 0xffff"); e("s_mov_b32 s14, 2621440"); e("s_mov_b32 s15, 0x20000")
    e("s_mul_i32 s22, s17, 1639"); e("s_lshr_b32 s22, s22, 16")
    e("s_mul_i32 s23, s22, 40"); e("s_sub_u32 s23, s17, s23")
    e("s_and_b32 s24, s16, 7"); e("s_lshl_b32 s24, s24, 2"); e("s_add_u32 s24, s24, s22")
    e("s_mul_i32 s24, s24, 81920")
    e("s_lshr_b32 s25, s16, 3"); e("s_mul_i32 s25, s25, 1280"); e("s_add_u32 s24, s24, s25")
    e("s_lshl_b32 s23, s23, 5"); e("s_add_u32 s24, s24, s23")
    e("v_and_b32 v4, 31, v2"); e("v_mul_u32_u24 v4, 2560, v4")
    e("v_lshrrev_b32 v5, 5, v2"); e("v_lshl_add_u32 v4, v5, 4, v4")
    e("s_mov_b32 s26, 0xffff0000")
    for hp in range(16):
        e(f"s_waitcnt vmcnt({15-hp})")
        for k in range(4):
            src = 16 + 4 * hp + k
            if hp == 0:
                e(f"v_lshlrev_b32 v{8+2*k}, 16, v{src}"); e(f"v_and_b32 v{9+2*k}, s26, v{src}")
            else:
                e(f"v_lshlrev_b32 v6, 16, v{src}"); e(f"v_and_b32 v7, s26, v{src}")
                e(f"v_add_f32 v{8+2*k}, v{8+2*k}, v6"); e(f"v_add_f32 v{9+2*k}, v{9+2*k}, v7")
    for k in range(4): e(f"v_cvt_pk_bf16_f32 v{16+k}, v{8+2*k}, v{9+2*k}")
    e("buffer_store_dwordx4 v[16:19], v4, s[12:15], s24 offen")
    lab("L_end2")
    e("s_endpgm")
    return K2

import struct
def f32hex(x): return "%08x" % struct.unpack("<I", struct.pack("<f", x))[0]

def desc(name, nv, ns):
    return f""".amdhsa_kernel {name}
  .amdhsa_next_free_vgpr {nv}
  .amdhsa_next_free_sgpr {ns}
  .amdhsa_accum_offset {(nv+3)//4*4}
  .amdhsa_group_segment_fixed_size 0
  .amdhsa_kernarg_size 104
  .amdhsa_user_sgpr_count 2
  .amdhsa_user_sgpr_kernarg_segment_ptr 1
  .amdhsa_system_sgpr_workgroup_id_x 1
.end_amdhsa_kernel"""

head = open(f"cdna_kernels/{NAME}.s.ref").read().split("; Override launch")[0]
k1 = kernel1(); k2 = kernel2()
txt = head
txt += f"; @launch kernel={k1} grid=(256,1,1) block=(512,1,1) lds={LDS_BYTES}\n"
txt += f"; @launch kernel={k2} grid=(640,1,1) block=(256,1,1) lds=0\n"
txt += '.amdgcn_target "amdgcn-amd-amdhsa--gfx950"\n.text\n'
txt += "\n".join(L) + "\n"
txt += '.section .rodata,"a"\n.p2align 6\n' + desc(k1, 256, 96) + "\n.p2align 6\n" + desc(k2, 80, 32) + "\n"
open(OUT, "w").write(txt)
print("wrote", OUT, len(txt), "bytes", len(L), "lines")
```

```python
import sys
NAME = "concat_heads__gqa_block_cached__gqa_block_cached__near_ridge"
OUT = sys.argv[1] if len(sys.argv) > 1 else f"cdna_kernels/{NAME}.s"
OPT = dict(a.split("=") for a in sys.argv[2:])
DEBUG = int(OPT.get("debug", 0))
ST_FLAGS = OPT.get("st", "").replace("+", " ")
KV_FLAGS = OPT.get("kv", "").replace("+", " ")
RD_FLAGS = OPT.get("rd", "").replace("+", " ")
WARM = int(OPT.get("warm", 1))
PRIO = int(OPT.get("prio", 0))
KVPF = int(OPT.get("kvpf", 0))
PFSH = int(OPT.get("pfsh", 2))
PFO = int(OPT.get("pfo", 36864))
PF_FLAGS = OPT.get("pff", "").replace("+", " ")
PFS = int(OPT.get("pfs", 0))
sPF = 4; sPFO = 3; vPFK = 11; vPFW = 19
PROF = int(OPT.get("prof", 0))
NODMA = int(OPT.get("nodma", 0)); NOMFMA = int(OPT.get("nomfma", 0))
nstamp = [0]
def stamp():
    if not PROF: return
    e("s_waitcnt lgkmcnt(0)")
    e("s_memrealtime s[96:97]")
    e("s_memtime s[98:99]")
    e("s_waitcnt lgkmcnt(0)")
    e(f"s_mov_b32 s{80+nstamp[0]}, s96")
    e(f"s_mov_b32 s{88+nstamp[0]}, s98")
    nstamp[0] += 1
def stamp_out():
    if not PROF: return
    e("s_waitcnt vmcnt(0)")
    stamp()
    for i in range(16): e(f"v_writelane_b32 v2, s{80+i}, {i}")
    e(f"s_lshl_b32 s{sTMP}, s2, 3"); e(f"s_add_u32 s{sTMP}, s{sTMP}, s{sW}")
    e(f"s_lshl_b32 s{sTMP}, s{sTMP}, 6")
    e(f"s_add_u32 s{sTMP}, s{sTMP}, 0x8000000")
    srd(sWS, sPTR+24, sTMP, 64)
    e(f"v_lshlrev_b32 v3, 2, v{vLANE}")
    e(f"buffer_store_dword v2, v3, {sr(sWS)}, 0 offen")
L = []
RARE = []
hr = [0]
def e(s):
    if NODMA and s.startswith("buffer_load") and " lds" in s and (NODMA == 1 or nstamp[0] >= 2): return
    if int(OPT.get("halfrd", 0)) and s.startswith("ds_read") and nstamp[0] >= 2:
        hr[0] += 1
        if hr[0] & 2: return
    if NOMFMA and (s.startswith("v_mfma") or s.startswith("ds_read") or s.startswith("v_exp") or s.startswith("v_fma") or s.startswith("v_max3")): return
    L.append(s if s.endswith(":") else "    " + s)
def lab(s): L.append(s + ":")
def cm(s): L.append("    ; " + s)

SLOT = 24576; NSLOT = 5; XA = SLOT * NSLOT
LDS_BYTES = XA + 32768
LA = 5

ACC = 160; QF = 112; SS = (80, 96); P = 72; AF = 48
vLANE, vHF, vT0, vT1, vT2, vT3 = 1, 2, 3, 4, 5, 6
vKREL, vVREL, vOREL = 8, 9, 10
vA = 12; vD = 16; vW = 20; vO = 24; vXO = 28; vXA = 32
vM, vMT, vL0, vL1, vMX, vMX2, vAL = 36, 37, 38, 39, 40, 41, 42
vST = 43; vEX = 44; vEXR = 45; vPF = 46; vPFA = 47
sK, sV, sWQ, sWO, sX, sWS = 8, 12, 16, 20, 24, 28
sCUR, sPREV, sWOFS, sW, sHALF, sQG = 32, 33, 34, 35, 36, 37
sCNT, sSOFF, sSOFF2, sXOFF, sC, sTMP, sTMP2, sXM0 = 38, 39, 40, 41, 42, 43, 44, 45
sSTO = 46; sSTO2 = 47
sPTR = 48
sBLK, sB, sHP, sH = 76, 77, 78, 79
sVOFF, sRS = 74, 75
OA = QF; OP = QF + 32; F = ACC

def vr(b, n): return f"v[{b}:{b+n-1}]"
def sr(b, n=4): return f"s[{b}:{b+n-1}]"

class VM:
    def __init__(s): s.ops = []
    def issue(s, tag, n=1): s.ops += [tag] * n
    def need(s, tags):
        for t in tags: assert t in s.ops, t
        last = max(i for i, t in enumerate(s.ops) if t in tags)
        return len(s.ops) - 1 - last
vm = VM()

def rotate_ops():
    return [f"s_mov_b32 s{sPREV}, s{sCUR}", f"s_add_u32 s{sCUR}, s{sCUR}, {SLOT}",
            f"s_cmp_eq_u32 s{sCUR}, {SLOT*NSLOT}", f"s_cselect_b32 s{sCUR}, 0, s{sCUR}"]

def dma3(srd, v0, soff, flags=""):
    return [f"buffer_load_dwordx4 v{v0+j}, {sr(srd)}, s{soff} offen offset:{1024*j} {flags} lds" for j in range(3)]

def load_ops(kind):
    if kind is None: return []
    ops = [f"s_add_u32 m0, s{sPREV}, s{sWOFS}", "s_nop 0"]
    if kind == "W":
        ops += dma3(sWQ, vW, sSOFF) + [f"s_add_u32 s{sSOFF}, s{sSOFF}, {32*12288}"]
    elif kind == "K":
        ops += dma3(sK, vD, sSOFF2, KV_FLAGS) + [f"s_add_u32 s{sSOFF2}, s{sSOFF2}, 12288\n    s_cmp_eq_u32 s{sSOFF2}, 196608\n    s_cselect_b32 s{sSOFF2}, 0, s{sSOFF2}"]
    elif kind == "V":
        ops += dma3(sV, vD, sVOFF, KV_FLAGS) + [f"s_add_u32 s{sVOFF}, s{sVOFF}, 12288\n    s_cmp_eq_u32 s{sVOFF}, 196608\n    s_cselect_b32 s{sVOFF}, 0, s{sVOFF}"]
    elif kind[0] == "O":
        rho = int(kind[1])
        ops += dma3(sWO, vO, sSOFF)
        ops += [f"s_add_u32 s{sSOFF}, s{sSOFF}, {96*1280}"] if rho < 3 else [f"s_sub_u32 s{sSOFF}, s{sSOFF}, {3*96*1280-256}"]
    return ops

def x_ops(xslot):
    return [f"s_add_u32 m0, s{sXM0}, {xslot*16384}", "s_nop 0",
            f"buffer_load_dwordx4 v{vXO}, {sr(sX)}, s{sXOFF} offen lds",
            f"buffer_load_dwordx4 v{vXO+1}, {sr(sX)}, s{sXOFF} offen offset:1024 lds",
            f"s_add_u32 s{sXOFF}, s{sXOFF}, 128"]
def x_reads(k):
    return [f"ds_read_b128 {vr(SS[k&1]+4*s_,4)}, v{vXA+s_} offset:{(k&1)*16384}" for s_ in range(4)]

def addr_ops(kind):
    if kind in ("W", "V"):
        return [f"v_add_u32 v{vA}, s{sCUR}, v{vVREL}", f"v_xor_b32 v{vA+1}, 16, v{vA}",
                f"v_xor_b32 v{vA+2}, 64, v{vA}", f"v_xor_b32 v{vA+3}, 0x50, v{vA}"]
    if kind == "K":
        return [f"v_add_u32 v{vA}, s{sCUR}, v{vKREL}"] + [f"v_xor_b32 v{vA+m}, {32*m}, v{vA}" for m in range(1, 4)]
    return [f"v_add_u32 v{vA}, s{sCUR}, v{vOREL}", f"v_xor_b32 v{vA+1}, 64, v{vA}"]

def frag_reads(kind, m):
    d = AF + 4 * (m % 6)
    if kind in ("W", "V"):
        v, t = divmod(m, 6)
        return [f"ds_read_b64_tr_b16 {vr(d+2*q,2)}, v{vA + q + 2*(t&1)} offset:{128*(t>>1) + 6144*v + 1536*q}" for q in range(2)]
    if kind == "K":
        return [f"ds_read_b128 {vr(d,4)}, v{vA+(m&3)} offset:{128*(m>>2)}"]
    tn, ee = divmod(m, 6)
    return [f"ds_read_b64_tr_b16 {vr(d+2*q,2)}, v{vA+tn} offset:{4096*ee+1024*q}" for q in range(2)]

def mfma(kind, m, par):
    d = vr(AF + 4 * (m % 6), 4)
    if int(OPT.get("m16", 0)):
        def mm(a, b, z=False): return f"v_mfma_f32_16x16x32_bf16 {vr(a,4)}, {d}, {vr(b,4)}, {'0' if z else vr(a,4)}"
        if kind == "W": b = SS[par[0]] + 8 * par[1]; return mm(ACC+8*m, b) + "\n    " + mm(ACC+8*m+4, b+4)
        if kind == "V": return mm(ACC+8*m, par) + "\n    " + mm(ACC+8*m+4, par+4)
        if kind == "K": a = SS[par] + 8 * (m & 1); return mm(a, QF+8*(m>>1), m < 2) + "\n    " + mm(a+4, QF+8*(m>>1)+4, m < 2)
        a = OA + 8 * (m // 3); b = F + 24 * par + 8 * (m % 3); z = par == 0 and m % 3 == 0
        return mm(a, b, z) + "\n    " + mm(a+4, b+4, z)
    if kind == "W":
        v, t = divmod(m, 6); a = vr(ACC + 16 * t, 16)
        return f"v_mfma_f32_32x32x16_bf16 {a}, {d}, {vr(SS[par[0]]+4*(2*par[1]+v),4)}, {a}"
    if kind == "V":
        v, t = divmod(m, 6); a = vr(ACC + 16 * t, 16)
        return f"v_mfma_f32_32x32x16_bf16 {a}, {d}, {vr(par+4*v,4)}, {a}"
    if kind == "K":
        a = vr(SS[par], 16)
        return f"v_mfma_f32_32x32x16_bf16 {a}, {d}, {vr(QF+4*m,4)}, {'0' if m == 0 else a}"
    tn, ee = divmod(m, 6); a = vr(OA + 16 * tn, 16)
    return f"v_mfma_f32_32x32x16_bf16 {a}, {d}, {vr(F+4*(6*par+ee),4)}, {'0' if (par == 0 and ee == 0) else a}"

def spread(items, lo, hi):
    n = hi - lo + 1; d = {}
    for i, x in enumerate(items): d.setdefault(lo + i * n // max(len(items), 1), []).append(x)
    return d

def step(kind, par, nxt, n, mem, valu=None, xrd=None, pre=None):
    k0 = kind[0]; nk = nxt[0] if nxt else None
    per = 1 if k0 == "K" else 2
    q = [f"f{m}" for m in range(6) for _ in range(per)]
    valu = valu or {}
    for x in (pre or []): e(x)
    mem = list(mem)
    for m in range(12):
        tag = f"f{m}"
        if tag in q:
            last = max(i for i, t in enumerate(q) if t == tag)
            e(f"s_waitcnt lgkmcnt({min(15, len(q)-1-last)})")
            q = q[last + 1:]
        e(mfma(k0, m, par))
        if m < 6:
            for r in frag_reads(k0, m + 6): e(r); q.append(f"f{m+6}")
        if m == 6:
            for x in rotate_ops(): e(x)
        if m == 7 and nk:
            for x in addr_ops(nk): e(x)
        for x in valu.get(m, []): e(x)
        if m == 8:
            e(f"s_waitcnt vmcnt({n}) lgkmcnt(0)"); e("s_barrier"); q = []
            for x in (xrd or []): e(x)
            if nk:
                for mm in range(3):
                    for r in frag_reads(nk, mm): e(r)
        if m == 11 and xrd: e("s_waitcnt lgkmcnt(12)")
        if m >= 9 and nk:
            for r in frag_reads(nk, m - 6): e(r)
        if m >= 8:
            nb = (sum(x.startswith("buffer") for x in mem) + (11 - m)) // (12 - m) if m > 8 else 0
            while mem and (m == 11 or nb > 0 or not mem[0].startswith("buffer")):
                x = mem.pop(0); e(x)
                if x.startswith("buffer"): nb -= 1

rid = [0]
def softA(S, setflag=True, nexp=8):
    rid[0] += 1; r = rid[0]
    o = [f"v_max3_f32 v{vMX}, v{S}, v{S+1}, v{S+2}"]
    o += [f"v_max3_f32 v{vMX}, v{vMX}, v{S+3+2*k}, v{S+4+2*k}" for k in range(6)]
    o += [f"v_max_f32 v{vMX}, v{vMX}, v{S+15}", f"v_mov_b32 v{vMX2}, v{vMX}\n    s_nop 1\n    v_permlane32_swap_b32 v{vMX}, v{vMX2}\n    s_nop 1",
          f"v_max_f32 v{vMX}, v{vMX}, v{vMX2}", f"v_mul_f32 v{vMX}, s{sC}, v{vMX}",
          f"v_cmp_gt_f32 vcc, v{vMX}, v{vMT}\n    s_cbranch_vccnz L_ra{r}\nL_rb{r}:\n    s_nop 0"]
    RARE.extend([f"L_ra{r}:", f"v_max_f32 v{vMX}, v{vMX}, v{vM}", f"v_sub_f32 v{vAL}, v{vM}, v{vMX}", f"v_exp_f32 v{vAL}, v{vAL}",
                 f"v_mov_b32 v{vM}, v{vMX}", f"v_add_f32 v{vMT}, s{sTMP2}, v{vMX}", f"v_mul_f32 v{vL0}, v{vL0}, v{vAL}",
                 f"v_mul_f32 v{vL1}, v{vL1}, v{vAL}"] + ([f"s_mov_b32 s{sRS}, 1"] if setflag else []) + [f"s_branch L_rb{r}"])
    o += [f"v_fma_f32 v{S+k}, v{S+k}, s{sC}, -v{vM}" for k in range(16)]
    o += [f"v_exp_f32 v{S+k}, v{S+k}" for k in range(nexp)]
    return o
def softB(S, Pd, nexp=8):
    o = [f"v_exp_f32 v{S+k}, v{S+k}" for k in range(nexp, 16)]
    for k in range(8):
        o += [f"v_cvt_pk_bf16_f32 v{Pd+k}, v{S+2*k}, v{S+2*k+1}"]
        if k < 6: o += [f"v_add_f32 v{vL0}, v{vL0}, v{S+2*k}", f"v_add_f32 v{vL1}, v{vL1}, v{S+2*k+1}"]
    for k in (6, 7): o += [f"v_add_f32 v{vL0}, v{vL0}, v{S+2*k}", f"v_add_f32 v{vL1}, v{vL1}, v{S+2*k+1}"]
    return o
def rescale_chk():
    rid[0] += 1; r = rid[0]
    RARE.extend([f"L_ra{r}:", "s_nop 15"] + [f"v_mul_f32 v{ACC+k}, v{ACC+k}, v{vAL}" for k in range(96)]
                + [f"s_mov_b32 s{sRS}, 0", "s_nop 1", f"s_branch L_rb{r}"])
    return f"s_cmp_lg_u32 s{sRS}, 0\n    s_cbranch_scc1 L_ra{r}\nL_rb{r}:\n    s_nop 0"
def merge(*ds):
    o = {}
    for d in ds:
        for k, v in d.items(): o.setdefault(k, []).extend(v)
    return o

def srd(d, ptr, off_s, nbytes):
    e(f"s_add_u32 s{d}, s{ptr}, s{off_s}")
    e(f"s_addc_u32 s{d+1}, s{ptr+1}, 0")
    e(f"s_and_b32 s{d+1}, s{d+1}, 0xffff")
    e(f"s_mov_b32 s{d+2}, {nbytes}" if isinstance(nbytes, int) else f"s_mov_b32 s{d+2}, s{nbytes[0]}")
    e(f"s_mov_b32 s{d+3}, 0x20000")

def swz(dst, r, tmp):
    e(f"v_bfe_u32 v{dst}, v{r}, 2, 2")
    e(f"v_bfe_u32 v{tmp}, v{r}, 1, 1")
    e(f"v_lshl_or_b32 v{dst}, v{tmp}, 2, v{dst}")

def kernel1():
    K1 = "attn_kernel"
    L.append(f".globl {K1}\n.p2align 8\n.type {K1},@function\n{K1}:")
    e(f"s_cmp_ge_u32 s2, {0 if int(OPT.get('empty',0))&1 else 256}")
    e("s_cbranch_scc1 L_end")
    if OPT.get("halfwg"):
        e(f"s_and_b32 s3, s2, {OPT['halfwg']}"); e("s_cbranch_scc1 L_end")
    e(f"s_load_dwordx16 s[{sPTR}:{sPTR+15}], s[0:1], 0")
    e(f"s_load_dwordx8 s[{sPTR+16}:{sPTR+23}], s[0:1], 64")
    e(f"s_load_dwordx2 s[{sPTR+24}:{sPTR+25}], s[0:1], 96")
    stamp()
    e(f"v_lshrrev_b32 v{vT0}, 6, v0")
    e(f"v_and_b32 v{vLANE}, 63, v0")
    e(f"v_readfirstlane_b32 s{sW}, v{vT0}")
    e(f"v_lshrrev_b32 v{vHF}, 5, v{vLANE}")
    e(f"s_bfe_u32 s{sBLK}, s2, 0x10002")
    e(f"s_bfe_u32 s{sB}, s2, 0x30003")
    e(f"s_and_b32 s{sHP}, s2, 3")
    e(f"s_lshl_b32 s{sHP}, s{sHP}, 2")
    e(f"s_lshr_b32 s{sTMP}, s2, 6")
    e(f"s_add_u32 s{sHP}, s{sHP}, s{sTMP}")
    e(f"s_lshr_b32 s{sHALF}, s{sW}, 2")
    e(f"s_and_b32 s{sQG}, s{sW}, 3")
    e(f"s_lshl_b32 s{sH}, s{sHP}, 1")
    e(f"s_add_u32 s{sH}, s{sH}, s{sHALF}")
    e(f"s_mul_i32 s{sWOFS}, s{sW}, 3072")
    e(f"s_lshl_b32 s{sXM0}, s{sW}, 11")
    e(f"s_add_u32 s{sXM0}, s{sXM0}, {XA}")
    e(f"s_mov_b32 s{sC}, 0x{f32hex(192**-0.5 * 1.4426950408889634)}")
    e(f"s_mov_b32 s{sTMP2}, 0x41000000")
    e(f"s_mul_i32 s{sTMP}, s{sQG}, 24")
    for j in range(3):
        e(f"v_lshrrev_b32 v{vT0}, 3, v{vLANE}")
        e(f"v_add_u32 v{vT0}, s{sTMP}, v{vT0}")
        if j: e(f"v_add_u32 v{vT0}, {8*j}, v{vT0}")
        e(f"v_mul_u32_u24 v{vT1}, 43, v{vT0}")
        e(f"v_lshrrev_b32 v{vT1}, 7, v{vT1}")
        swz(vT2, vT1, vT3)
        e(f"v_and_b32 v{vT3}, 7, v{vLANE}")
        e(f"v_xor_b32 v{vT2}, v{vT2}, v{vT3}")
        e(f"v_lshlrev_b32 v{vT2}, 4, v{vT2}")
        e(f"v_lshl_add_u32 v{vD+j}, v{vT0}, 7, v{vT2}")
        if j: e(f"v_subrev_u32 v{vD+j}, {1024*j}, v{vD+j}")
        e(f"v_mul_u32_u24 v{vT1}, {12288-384}, v{vT1}")
        e(f"v_add_u32 v{vW+j}, v{vD+j}, v{vT1}")
    e(f"v_lshrrev_b32 v{vT0}, 4, v{vLANE}")
    e(f"v_lshlrev_b32 v{vT1}, 2, v{vT0}")
    e(f"v_and_b32 v{vT2}, 15, v{vLANE}")
    e(f"v_xor_b32 v{vT1}, v{vT1}, v{vT2}")
    e(f"v_lshlrev_b32 v{vT1}, 4, v{vT1}")
    e(f"s_mul_i32 s{sTMP}, s{sW}, 12")
    e(f"v_add_u32 v{vT0}, s{sTMP}, v{vT0}")
    e(f"v_mul_u32_u24 v{vT0}, 1280, v{vT0}")
    e(f"v_add_u32 v{vO}, v{vT0}, v{vT1}")
    e(f"v_add_u32 v{vO+1}, {4*1280-1024}, v{vO}")
    e(f"v_add_u32 v{vO+2}, {2*(4*1280-1024)}, v{vO}")
    for pj in range(2):
        e(f"v_lshrrev_b32 v{vT0}, 4, v{vLANE}")
        if pj: e(f"v_add_u32 v{vT0}, 4, v{vT0}")
        e(f"v_and_b32 v{vT1}, 7, v{vLANE}")
        e(f"v_xor_b32 v{vT1}, v{vT1}, v{vT0}")
        e(f"v_lshlrev_b32 v{vT1}, 4, v{vT1}")
        e(f"s_lshl_b32 s{sTMP}, s{sW}, 4")
        e(f"v_lshrrev_b32 v{vT0}, 3, v{vLANE}")
        e(f"v_add_u32 v{vT0}, s{sTMP}, v{vT0}")
        e(f"v_mul_u32_u24 v{vT0}, 1280, v{vT0}")
        e(f"v_add_u32 v{vXO+pj}, v{vT0}, v{vT1}")
        if pj: e(f"v_add_u32 v{vXO+pj}, {8*1280-1024}, v{vXO+pj}")
    e("s_waitcnt lgkmcnt(0)")
    e(f"s_cmp_eq_u32 s{sBLK}, 0")
    for k in range(5):
        e(f"s_cselect_b64 s[{sPTR+2*k}:{sPTR+2*k+1}], s[{sPTR+2*k}:{sPTR+2*k+1}], s[{sPTR+10+2*k}:{sPTR+11+2*k}]")
    e(f"s_mul_i32 s{sTMP}, s{sB}, 163840"); srd(sX, sPTR, sTMP, 163840)
    e(f"s_mul_i32 s{sTMP}, s{sH}, 384")
    e(f"s_sub_u32 s{sCNT}, {640*12288}, s{sTMP}"); srd(sWQ, sPTR+6, sTMP, (sCNT,))
    e(f"s_mov_b32 s{sSOFF}, 0"); e(f"s_mov_b32 s{sXOFF}, 0"); e(f"s_mov_b32 s{sSOFF2}, 0"); e(f"s_mov_b32 s{sVOFF}, 0"); e(f"s_mov_b32 s{sRS}, 0")
    for i in range(LA):
        e(f"s_mov_b32 s{sPREV}, {SLOT*i}")
        if i < 2:
            for x in x_ops(i): e(x)
            vm.issue(f"x{i}", 2)
        for x in load_ops("W"): e(x)
        vm.issue(f"t{i}", 3)
    if WARM:
        e(f"v_mul_u32_u24 v{vT0}, 171, v0"); e(f"v_lshrrev_b32 v{vT0}, 10, v{vT0}")
        e(f"v_mul_u32_u24 v{vT1}, {12288-768}, v{vT0}")
        e(f"v_lshlrev_b32 v{vPFA}, 7, v0")
        e(f"v_add_u32 v{vPFW}, v{vT1}, v{vPFA}")
        e(f"s_mul_i32 s{sTMP}, s{sHP}, 768"); e(f"s_mul_i32 s{sCNT}, s{sB}, {20*12288}"); e(f"s_add_u32 s{sTMP}, s{sTMP}, s{sCNT}")
        e(f"s_add_u32 s{sTMP}, s{sTMP}, {160*12288}")
        srd(sWO, sPTR+6, sTMP, 19*12288+768)
        e(f"buffer_load_dword v{vPF}, v{vPFW}, {sr(sWO)}, 0 offen")
        e(f"s_add_u32 s{sTMP}, s{sTMP}, s{sCNT}"); e(f"s_add_u32 s{sTMP}, s{sTMP}, {160*12288}")
        srd(sPF, sPTR+6, sTMP, 39*12288+768)
        vm.issue("pf", 1)
    e(f"s_mov_b32 s{sCUR}, 0")
    ROT = int(OPT.get("rot", 1))
    if ROT:
        if ROT == 1:
            e(f"s_lshl_b32 s{sTMP}, s{sB}, 1"); e(f"s_add_u32 s{sTMP}, s{sTMP}, s{sH}"); e(f"s_add_u32 s{sTMP}, s{sTMP}, s{sBLK}")
        elif ROT == 2:
            e(f"s_mul_i32 s{sTMP}, s{sB}, 3"); e(f"s_mul_i32 s{sCNT}, s{sH}, 5"); e(f"s_add_u32 s{sTMP}, s{sTMP}, s{sCNT}")
            e(f"s_lshl_b32 s{sCNT}, s{sBLK}, 3"); e(f"s_add_u32 s{sTMP}, s{sTMP}, s{sCNT}")
        elif ROT == 3:
            e(f"s_lshl_b32 s{sTMP}, s{sB}, 1"); e(f"s_add_u32 s{sTMP}, s{sTMP}, s{sHP}")
        e(f"s_and_b32 s{sTMP}, s{sTMP}, 15"); e(f"s_mul_i32 s{sSOFF2}, s{sTMP}, 12288"); e(f"s_mov_b32 s{sVOFF}, s{sSOFF2}")
    e(f"s_lshl_b32 s{sTMP}, s{sB}, 5")
    e(f"s_add_u32 s{sTMP}, s{sTMP}, s{sH}")
    e(f"s_mul_i32 s{sTMP}, s{sTMP}, 196608")
    srd(sK, sPTR+2, sTMP, 196608); srd(sV, sPTR+4, sTMP, 196608)
    e(f"s_mul_i32 s{sTMP}, s{sHP}, 491520"); srd(sWO, sPTR+8, sTMP, 491520)
    e(f"s_lshl_b32 s{sTMP}, s{sBLK}, 3"); e(f"s_add_u32 s{sTMP}, s{sTMP}, s{sB}")
    e(f"s_lshl_b32 s{sTMP}, s{sTMP}, 4"); e(f"s_add_u32 s{sTMP}, s{sTMP}, s{sHP}")
    e(f"s_mul_i32 s{sTMP}, s{sTMP}, 163840")
    e(f"s_mul_i32 s{sCNT}, s{sQG}, 40960"); e(f"s_add_u32 s{sTMP}, s{sTMP}, s{sCNT}")
    srd(sWS, sPTR+24, sTMP, 40960)
    e(f"s_lshl_b32 s{sSTO}, s{sHALF}, 12")
    e(f"v_lshlrev_b32 v{vST}, 4, v{vLANE}")
    e(f"s_mul_i32 s{sTMP}, s{sHALF}, 12288")
    e(f"v_and_b32 v{vT0}, 0x13, v{vLANE}")
    e(f"v_bfe_u32 v{vT1}, v{vLANE}, 2, 1"); e(f"v_lshl_or_b32 v{vT0}, v{vT1}, 3, v{vT0}")
    e(f"v_bfe_u32 v{vT1}, v{vLANE}, 3, 1"); e(f"v_lshl_or_b32 v{vT0}, v{vT1}, 2, v{vT0}")
    swz(vT1, vT0, vT2)
    e(f"v_xor_b32 v{vT1}, v{vT1}, v{vHF}")
    e(f"v_lshlrev_b32 v{vT1}, 4, v{vT1}")
    e(f"v_mul_u32_u24 v{vT0}, 384, v{vT0}")
    e(f"v_add3_u32 v{vKREL}, v{vT0}, v{vT1}, s{sTMP}")
    e(f"v_bfe_u32 v{vT0}, v{vLANE}, 2, 2")
    e(f"v_lshl_add_u32 v{vT0}, v{vHF}, 3, v{vT0}")
    e(f"v_mul_u32_u24 v{vT0}, 384, v{vT0}")
    e(f"v_bfe_u32 v{vT1}, v{vLANE}, 3, 1"); e(f"v_lshl_add_u32 v{vT0}, v{vT1}, 6, v{vT0}")
    e(f"v_bfe_u32 v{vT1}, v{vLANE}, 4, 1"); e(f"v_xor_b32 v{vT1}, v{vT1}, v{vHF}"); e(f"v_lshl_add_u32 v{vT0}, v{vT1}, 5, v{vT0}")
    e(f"v_and_b32 v{vT1}, 1, v{vLANE}"); e(f"v_lshl_add_u32 v{vT0}, v{vT1}, 4, v{vT0}")
    e(f"v_bfe_u32 v{vT1}, v{vLANE}, 1, 1"); e(f"v_lshl_add_u32 v{vT0}, v{vT1}, 3, v{vT0}")
    e(f"v_add_u32 v{vVREL}, s{sTMP}, v{vT0}")
    e(f"v_bfe_u32 v{vT0}, v{vLANE}, 2, 2")
    e(f"v_lshlrev_b32 v{vT2}, 2, v{vT0}")
    e(f"v_lshl_add_u32 v{vT0}, v{vHF}, 3, v{vT0}")
    e(f"v_lshlrev_b32 v{vT0}, 8, v{vT0}")
    e(f"v_bfe_u32 v{vT1}, v{vLANE}, 4, 1"); e(f"v_lshlrev_b32 v{vT1}, 1, v{vT1}")
    e(f"v_and_b32 v{vT3}, 1, v{vLANE}"); e(f"v_or_b32 v{vT1}, v{vT1}, v{vT3}")
    e(f"s_lshl_b32 s{sTMP}, s{sHALF}, 3")
    e(f"v_or_b32 v{vT1}, s{sTMP}, v{vT1}")
    e(f"v_xor_b32 v{vT1}, v{vT1}, v{vT2}")
    e(f"v_lshl_add_u32 v{vT0}, v{vT1}, 4, v{vT0}")
    e(f"v_bfe_u32 v{vT1}, v{vLANE}, 1, 1"); e(f"v_lshl_add_u32 v{vOREL}, v{vT1}, 3, v{vT0}")
    e(f"v_and_b32 v{vT0}, 31, v{vLANE}")
    e(f"v_bfe_u32 v{vT1}, v{vLANE}, 1, 3")
    e(f"v_xor_b32 v{vT1}, v{vT1}, v{vHF}")
    e(f"v_lshlrev_b32 v{vT1}, 4, v{vT1}")
    e(f"v_lshl_add_u32 v{vT0}, v{vT0}, 7, v{vT1}")
    e(f"s_lshl_b32 s{sTMP}, s{sQG}, 12"); e(f"s_add_u32 s{sTMP}, s{sTMP}, {XA}")
    e(f"v_add_u32 v{vXA}, s{sTMP}, v{vT0}")
    for m in range(1, 4): e(f"v_xor_b32 v{vXA+m}, {32*m}, v{vXA}")
    e(f"v_add_u32 v{vEXR}, s{sTMP}, v{vST}")
    e(f"s_lshl_b32 s{sTMP}, s{sW}, 12"); e(f"s_add_u32 s{sTMP}, s{sTMP}, {XA}")
    e(f"v_add_u32 v{vEX}, s{sTMP}, v{vST}")
    for r in range(96): e(f"v_mov_b32 v{ACC+r}, 0")
    e(f"v_mov_b32 v{vM}, 0xf149f2ca"); e(f"v_mov_b32 v{vMT}, 0xf149f2ca")
    e(f"v_mov_b32 v{vL0}, 0"); e(f"v_mov_b32 v{vL1}, 0")


    kinds = ["W"] * 20 + ["K", "K"] + ["V", "K"] * 14 + ["V", "V"] + ["O0", "O1", "O2", "O3"] * 5
    NT = len(kinds); assert NT == 72
    WOPF = 46
    first = vm.need(["t0", "x0"])
    if WARM: vm.issue("pf", 2)
    waits = []
    for i in range(NT):
        if kinds[i] == "O0": vm.issue("st", 2)
        need = ([f"t{i+1}"] if i + 1 < NT + 1 else []) + ([f"x{(i+1)//2}"] if i < 18 and i % 2 == 1 else [])
        waits.append(vm.need(need))
        if i < 16 and i % 2 == 0: vm.issue(f"x{i//2+2}", 2)
        vm.issue(f"t{i+LA}", 3)
        if i == WOPF and WARM: vm.issue("pf", 1)
        if KVPF and i < max(12, KVPF): vm.issue("pf", 1)
        if kinds[i] == "O3": vm.issue("st", 2)
    kx = kinds + ["O0", "O1", "O2", "O3", "O0", "O1"]
    def same(idx, stride, cnt): return min(waits[idx + stride * k] for k in range(cnt))
    def qstep(i, n):
        k = i // 2
        mem = (x_ops(k & 1) if (i < 16 and i % 2 == 0) else []) + load_ops(kx[i + LA])
        if KVPF and i < max(12, KVPF):
            mem += [f"buffer_load_dword v7, v{vPFK}, {sr(sPF)}, s{sPFO} offen {PF_FLAGS}",
                    f"s_cmp_lg_u32 s{sPF+2}, 0\n    s_cselect_b32 s{sTMP}, {16384 >> PFSH}, 0\n    s_add_u32 s{sPFO}, s{sPFO}, s{sTMP}\n    s_cmp_eq_u32 s{sPFO}, 196608\n    s_cselect_b32 s{sPFO}, 0, s{sPFO}"]
            if i == 3 and PFS: mem += [f"s_cmp_eq_u32 s{sCNT}, {4-PFS}\n    s_cselect_b32 s{sPF+2}, 196608, s{sPF+2}"]
        valu = {}
        if i == 19:
            for t in range(3): valu[9 + t] = [f"v_cvt_pk_bf16_f32 v{QF+8*t+j}, v{ACC+16*t+2*j}, v{ACC+16*t+2*j+1}" for j in range(8)]
        step("W", (k & 1, i & 1), kx[i + 1], n, mem, valu, x_reads(k + 1) if (i < 18 and i % 2 == 1) else None)
    cm("Q phase")
    if PRIO:
        e(f"s_cmp_eq_u32 s{sHALF}, 0"); e("s_cbranch_scc1 L_np"); e("s_setprio 1"); lab("L_np")
    for x in addr_ops("W"): e(x)
    e(f"s_waitcnt vmcnt({first})"); e("s_barrier")
    stamp()
    for x in x_reads(0): e(x)
    if WARM:
        e(f"s_lshr_b32 s{sTMP}, s2, 6"); e(f"s_mul_i32 s{sTMP}, s{sTMP}, 40960")
        e(f"buffer_load_dword v7, v{vPFA}, {sr(sX)}, s{sTMP} offen")
        e(f"buffer_load_dword v{vPF}, v{vPFW}, {sr(sPF)}, 0 offen")
    if KVPF:
        e(f"s_and_b32 s{sTMP}, s{sQG}, 1"); e(f"s_cmp_eq_u32 s{sTMP}, 0")
        e(f"s_cselect_b32 s{sPF}, s{sK}, s{sV}"); e(f"s_cselect_b32 s{sPF+1}, s{sK+1}, s{sV+1}")
        e(f"s_mov_b32 s{sPF+2}, {196608 if PFS == 0 else 0}"); e(f"s_mov_b32 s{sPF+3}, 0x20000")
        e(f"s_lshr_b32 s{sTMP}, s{sQG}, 1"); e(f"s_lshl_b32 s{sTMP}, s{sTMP}, {13-PFSH}")
        e(f"s_add_u32 s{sPFO}, s{sVOFF}, {PFO}"); e(f"s_sub_u32 s{sCNT}, s{sPFO}, 196608"); e(f"s_cmp_ge_u32 s{sPFO}, 196608"); e(f"s_cselect_b32 s{sPFO}, s{sCNT}, s{sPFO}")
        e(f"v_lshrrev_b32 v{vPFK}, {PFSH}, v{vLANE}"); e(f"v_lshlrev_b32 v{vPFK}, 7, v{vPFK}"); e(f"v_add_u32 v{vPFK}, s{sTMP}, v{vPFK}")
    e("s_waitcnt lgkmcnt(2)")
    for m in range(6):
        for r in frag_reads("W", m): e(r)
    e(f"s_mov_b32 s{sCNT}, 3")
    lab("L_q")
    for k in range(4): qstep(k, same(k, 4, 3))
    e(f"s_sub_u32 s{sCNT}, s{sCNT}, 1"); e(f"s_cmp_lg_u32 s{sCNT}, 0"); e("s_cbranch_scc1 L_q")
    for i in range(12, 20): qstep(i, waits[i])
    e(f"s_mov_b32 s{sSOFF}, 0")
    cm("attention phase")
    if PROF: stamp()
    cv = {}
    for t in range(3, 6): cv[t - 3] = [f"v_cvt_pk_bf16_f32 v{QF+8*t+j}, v{ACC+16*t+2*j}, v{ACC+16*t+2*j+1}" for j in range(8)]
    z = [f"v_mov_b32 v{ACC+r}, 0" for r in range(96)]
    step("K", 0, "K", waits[20], load_ops(kx[25]), merge(cv, spread(z, 3, 11)), pre=["s_nop 1"])
    step("K", 1, "V", waits[21], load_ops(kx[26]), spread(softA(SS[0], False) + softB(SS[0], P), 2, 11))
    def av(i, n, sidx, extra=[]):
        step("V", P, kx[i + 1], n, load_ops(kx[i + LA]) + extra, spread(softA(SS[sidx]), 2, 11), pre=["s_nop 0"])
    def ak(i, n, sidx):
        step("K", sidx, kx[i + 1], n, load_ops(kx[i + LA]), merge({2: [rescale_chk()]}, spread(softB(SS[1 - sidx], P), 0, 11)))
    e(f"s_mov_b32 s{sCNT}, 6")
    lab("L_a")
    av(22, same(22, 4, 6), 1); ak(23, same(23, 4, 6), 0); av(24, same(24, 4, 6), 0); ak(25, same(25, 4, 6), 1)
    e(f"s_sub_u32 s{sCNT}, s{sCNT}, 1"); e(f"s_cmp_lg_u32 s{sCNT}, 0"); e("s_cbranch_scc1 L_a")
    pf = [f"s_mul_i32 s{sTMP}, s{sB}, 61440", f"buffer_load_dword v{vPF}, v{vPFA}, {sr(sWO)}, s{sTMP} offen"] if WARM else []
    av(46, waits[46], 1, pf); ak(47, waits[47], 0); av(48, waits[48], 0); ak(49, waits[49], 1)
    step("V", P, "V", waits[50], load_ops(kx[55]), spread(softA(SS[1]) + softB(SS[1], SS[0]), 2, 11), pre=["s_nop 0"])
    step("V", SS[0], "O0", waits[51], load_ops(kx[56]), pre=[rescale_chk()])
    cm("normalise + exchange")
    if PROF: stamp()
    e(f"v_add_f32 v{vL0}, v{vL0}, v{vL1}")
    e(f"v_mov_b32 v{vL1}, v{vL0}")
    e("s_nop 1")
    e(f"v_permlane32_swap_b32 v{vL0}, v{vL1}")
    e("s_nop 1")
    e(f"v_add_f32 v{vL0}, v{vL0}, v{vL1}")
    e(f"v_rcp_f32 v{vMX}, v{vL0}")
    e("s_nop 7")
    e(f"v_mov_b32 v{vMX+1}, v{vMX}")
    for rho in range(3):
        for r in range(16): e(f"v_pk_mul_f32 {vr(ACC+32*rho+2*r,2)}, {vr(ACC+32*rho+2*r,2)}, {vr(vMX,2)}")
        for k in range(16): e(f"v_cvt_pk_bf16_f32 v{QF+16*rho+k}, v{ACC+32*rho+2*k}, v{ACC+32*rho+2*k+1}")
        if rho == 0:
            for f in range(4): e(f"ds_write_b128 v{vEX}, {vr(QF+4*f,4)} offset:{1024*f}")
    if DEBUG == 2: dump(QF, 12)
    for rho in range(3):
        if rho:
            for f in range(4): e(f"ds_write_b128 v{vEX}, {vr(QF+16*rho+4*f,4)} offset:{1024*f}")
        e("s_waitcnt lgkmcnt(0)"); e("s_barrier")
        for f in range(4):
            e(f"ds_read_b128 {vr(F+16*rho+4*f,4)}, v{vEXR} offset:{1024*f}")
            e(f"ds_read_b128 {vr(F+48+16*rho+4*f,4)}, v{vEXR} offset:{16384+1024*f}")
        e("s_waitcnt lgkmcnt(0)")
        if rho < 2: e("s_barrier")
    cm("O phase")
    if PROF: stamp()
    def ocv(tn, so):
        o = [f"v_cvt_pk_bf16_f32 v{OP+8*tn+k}, v{OA+16*tn+2*k}, v{OA+16*tn+2*k+1}" for k in range(8)]
        return o + [f"buffer_store_dwordx4 {vr(OP+8*tn+4*k,4)}, v{vST}, {sr(sWS)}, s{so} offen offset:{2048*tn+1024*k} {ST_FLAGS}".rstrip() for k in range(2)]
    e(f"s_mov_b32 s{sSTO2}, 0x100000")
    e(f"s_mov_b32 s{sCNT}, 5")
    lab("L_o")
    for rho in range(4):
        valu = {}; mem = load_ops(f"O{(rho+1)%4}")
        if rho == 0: valu = spread(ocv(1, sSTO2), 2, 5)
        if rho == 3:
            mem = [f"s_cmp_le_u32 s{sCNT}, 2", f"s_cselect_b32 s{sWO+2}, 0, s{sWO+2}"] + mem + ocv(0, sSTO)[8:] + [f"s_mov_b32 s{sSTO2}, s{sSTO}", f"s_add_u32 s{sSTO}, s{sSTO}, 8192"]
            valu = spread(ocv(0, sSTO)[:8], 8, 9)
        step("O", rho, "O", same(52 + rho, 4, 5), mem, valu)
    e(f"s_sub_u32 s{sCNT}, s{sCNT}, 1"); e(f"s_cmp_lg_u32 s{sCNT}, 0"); e("s_cbranch_scc1 L_o")
    e("s_nop 15")
    for x in ocv(1, sSTO2): e(x)
    stamp()
    stamp_out()
    lab("L_end")
    e("s_endpgm")
    for x in RARE: e(x)
    return K1

def dump(base, nfrag):
    e(f"s_lshl_b32 s{sTMP}, s2, 3"); e(f"s_add_u32 s{sTMP}, s{sTMP}, s{sW}")
    e(f"s_mul_i32 s{sTMP}, s{sTMP}, {nfrag*1024}")
    e(f"s_add_u32 s{sTMP}, s{sTMP}, 0x4000000")
    srd(sWS, sPTR+24, sTMP, nfrag*1024)
    for f in range(nfrag):
        e(f"s_mov_b32 s{sTMP}, {1024*f}")
        e(f"buffer_store_dwordx4 {vr(base+4*f,4)}, v{vST}, {sr(sWS)}, s{sTMP} offen")
    e("s_waitcnt vmcnt(0)")
    e("s_endpgm")

def kernel2():
    K2 = "reduce_kernel"
    L.append(f".globl {K2}\n.p2align 8\n.type {K2},@function\n{K2}:")
    e(f"s_cmp_ge_u32 s2, {0 if int(OPT.get('empty',0))&2 else 640}")
    e("s_cbranch_scc1 L_end2")
    e("s_load_dwordx2 s[4:5], s[0:1], 80")
    e("s_load_dwordx2 s[6:7], s[0:1], 96")
    e("s_mul_i32 s16, s2, 1639"); e("s_lshr_b32 s16, s16, 16")
    e("s_mul_i32 s17, s16, 40"); e("s_sub_u32 s17, s2, s17")
    e("v_lshrrev_b32 v1, 6, v0")
    e("s_nop 0")
    e("v_readfirstlane_b32 s18, v1")
    e("s_lshl_b32 s17, s17, 2")
    e("s_nop 1")
    e("s_add_u32 s17, s17, s18")
    e("v_and_b32 v2, 63, v0")
    e("v_lshlrev_b32 v3, 4, v2")
    e("s_mul_i32 s19, s16, 2621440")
    e("s_lshl_b32 s20, s17, 10"); e("s_add_u32 s19, s19, s20")
    e("s_waitcnt lgkmcnt(0)")
    e("s_add_u32 s8, s6, s19"); e("s_addc_u32 s9, s7, 0"); e("s_and_b32 s9, s9, 0xffff")
    e(f"s_mov_b32 s10, {15*163840+1024}"); e("s_mov_b32 s11, 0x20000")
    e("s_mov_b32 s21, 0")
    for hp in range(16):
        e(f"buffer_load_dwordx4 {vr(16+4*hp,4)}, v3, s[8:11], s21 offen {RD_FLAGS}".rstrip())
        if hp < 15: e("s_add_u32 s21, s21, 163840")
    e("s_mov_b32 s12, s4"); e("s_and_b32 s13, s5, 0xffff"); e("s_mov_b32 s14, 2621440"); e("s_mov_b32 s15, 0x20000")
    e("s_mul_i32 s22, s17, 1639"); e("s_lshr_b32 s22, s22, 16")
    e("s_mul_i32 s23, s22, 40"); e("s_sub_u32 s23, s17, s23")
    e("s_and_b32 s24, s16, 7"); e("s_lshl_b32 s24, s24, 2"); e("s_add_u32 s24, s24, s22")
    e("s_mul_i32 s24, s24, 81920")
    e("s_lshr_b32 s25, s16, 3"); e("s_mul_i32 s25, s25, 1280"); e("s_add_u32 s24, s24, s25")
    e("s_lshl_b32 s23, s23, 5"); e("s_add_u32 s24, s24, s23")
    e("v_and_b32 v4, 31, v2"); e("v_mul_u32_u24 v4, 2560, v4")
    e("v_lshrrev_b32 v5, 5, v2"); e("v_lshl_add_u32 v4, v5, 4, v4")
    e("s_mov_b32 s26, 0xffff0000")
    for hp in range(16):
        e(f"s_waitcnt vmcnt({15-hp})")
        for k in range(4):
            src = 16 + 4 * hp + k
            if hp == 0:
                e(f"v_lshlrev_b32 v{8+2*k}, 16, v{src}"); e(f"v_and_b32 v{9+2*k}, s26, v{src}")
            else:
                e(f"v_lshlrev_b32 v6, 16, v{src}"); e(f"v_and_b32 v7, s26, v{src}")
                e(f"v_add_f32 v{8+2*k}, v{8+2*k}, v6"); e(f"v_add_f32 v{9+2*k}, v{9+2*k}, v7")
    for k in range(4): e(f"v_cvt_pk_bf16_f32 v{16+k}, v{8+2*k}, v{9+2*k}")
    e("buffer_store_dwordx4 v[16:19], v4, s[12:15], s24 offen")
    lab("L_end2")
    e("s_endpgm")
    return K2

import struct
def f32hex(x): return "%08x" % struct.unpack("<I", struct.pack("<f", x))[0]

def desc(name, nv, ns):
    return f""".amdhsa_kernel {name}
  .amdhsa_next_free_vgpr {nv}
  .amdhsa_next_free_sgpr {ns}
  .amdhsa_accum_offset {(nv+3)//4*4}
  .amdhsa_group_segment_fixed_size 0
  .amdhsa_kernarg_size 104
  .amdhsa_user_sgpr_count 2
  .amdhsa_user_sgpr_kernarg_segment_ptr 1
  .amdhsa_system_sgpr_workgroup_id_x 1
.end_amdhsa_kernel"""

head = open(f"cdna_kernels/{NAME}.s.ref").read().split("; Override launch")[0]
k1 = kernel1(); k2 = kernel2()
txt = head
txt += f"; @launch kernel={k1} grid=(256,1,1) block=(512,1,1) lds={LDS_BYTES}\n"
txt += f"; @launch kernel={k2} grid=(640,1,1) block=(256,1,1) lds=0\n"
txt += '.amdgcn_target "amdgcn-amd-amdhsa--gfx950"\n.text\n'
txt += "\n".join(L) + "\n"
txt += '.section .rodata,"a"\n.p2align 6\n' + desc(k1, 256, 100) + "\n.p2align 6\n" + desc(k2, 80, 32) + "\n"
open(OUT, "w").write(txt)
print("wrote", OUT, len(txt), "bytes", len(L), "lines")
```

```python
import sys
NAME = "concat_heads__gqa_block_cached__gqa_block_cached__near_ridge"
OUT = sys.argv[1] if len(sys.argv) > 1 else f"cdna_kernels/{NAME}.s"
OPT = dict(a.split("=") for a in sys.argv[2:])
DEBUG = int(OPT.get("debug", 0))
ST_FLAGS = OPT.get("st", "").replace("+", " ")
KV_FLAGS = OPT.get("kv", "").replace("+", " ")
RD_FLAGS = OPT.get("rd", "").replace("+", " ")
WARM = int(OPT.get("warm", 1))
PRIO = int(OPT.get("prio", 0))
KVPF = int(OPT.get("kvpf", 0))
PFSH = int(OPT.get("pfsh", 2))
PFO = int(OPT.get("pfo", 36864))
PF_FLAGS = OPT.get("pff", "").replace("+", " ")
PFS = int(OPT.get("pfs", 0))
sPF = 4; sPFO = 3; vPFK = 11; vPFW = 19
FUSE = int(OPT.get("fuse", 1))
if FUSE and "sc1" not in ST_FLAGS: ST_FLAGS = "sc1"
PROF = int(OPT.get("prof", 0))
NODMA = int(OPT.get("nodma", 0)); NOMFMA = int(OPT.get("nomfma", 0))
nstamp = [0]
def stamp():
    if not PROF: return
    e("s_waitcnt lgkmcnt(0)")
    e("s_memrealtime s[96:97]")
    e("s_memtime s[98:99]")
    e("s_waitcnt lgkmcnt(0)")
    e(f"s_mov_b32 s{80+nstamp[0]}, s96")
    e(f"s_mov_b32 s{88+nstamp[0]}, s98")
    nstamp[0] += 1
def stamp_out():
    if not PROF: return
    e("s_waitcnt vmcnt(0)")
    stamp()
    for i in range(16): e(f"v_writelane_b32 v2, s{80+i}, {i}")
    e(f"s_lshl_b32 s{sTMP}, s2, 3"); e(f"s_add_u32 s{sTMP}, s{sTMP}, s{sW}")
    e(f"s_lshl_b32 s{sTMP}, s{sTMP}, 6")
    e(f"s_add_u32 s{sTMP}, s{sTMP}, 0x8000000")
    srd(sWS, sPTR+24, sTMP, 64)
    e(f"v_lshlrev_b32 v3, 2, v{vLANE}")
    e(f"buffer_store_dword v2, v3, {sr(sWS)}, 0 offen")
L = []
RARE = []
hr = [0]
def e(s):
    if NODMA and s.startswith("buffer_load") and " lds" in s and (NODMA == 1 or nstamp[0] >= 2): return
    if int(OPT.get("halfrd", 0)) and s.startswith("ds_read") and nstamp[0] >= 2:
        hr[0] += 1
        if hr[0] & 2: return
    if NOMFMA and (s.startswith("v_mfma") or s.startswith("ds_read") or s.startswith("v_exp") or s.startswith("v_fma") or s.startswith("v_max3")): return
    L.append(s if s.endswith(":") else "    " + s)
def lab(s): L.append(s + ":")
def cm(s): L.append("    ; " + s)

SLOT = 24576; NSLOT = 5; XA = SLOT * NSLOT
LDS_BYTES = XA + 32768
LA = 5

ACC = 160; QF = 112; SS = (80, 96); P = 72; AF = 48
vLANE, vHF, vT0, vT1, vT2, vT3 = 1, 2, 3, 4, 5, 6
vKREL, vVREL, vOREL = 8, 9, 10
vA = 12; vD = 16; vW = 20; vO = 24; vXO = 28; vXA = 32
vM, vMT, vL0, vL1, vMX, vMX2, vAL = 36, 37, 38, 39, 40, 41, 42
vST = 43; vEX = 44; vEXR = 45; vPF = 46; vPFA = 47
sK, sV, sWQ, sWO, sX, sWS = 8, 12, 16, 20, 24, 28
sCUR, sPREV, sWOFS, sW, sHALF, sQG = 32, 33, 34, 35, 36, 37
sCNT, sSOFF, sSOFF2, sXOFF, sC, sTMP, sTMP2, sXM0 = 38, 39, 40, 41, 42, 43, 44, 45
sSTO = 46; sSTO2 = 47
sPTR = 48
sBLK, sB, sHP, sH = 76, 77, 78, 79
sVOFF, sRS = 74, 75
OA = QF; OP = QF + 32; F = ACC
XS = (112, 80); vXB = 72; vWREL = 76; vQW = 77; vQR = 78; QXB = 106496

def vr(b, n): return f"v[{b}:{b+n-1}]"
def sr(b, n=4): return f"s[{b}:{b+n-1}]"

class VM:
    def __init__(s): s.ops = []
    def issue(s, tag, n=1): s.ops += [tag] * n
    def need(s, tags):
        for t in tags: assert t in s.ops, t
        last = max(i for i, t in enumerate(s.ops) if t in tags)
        return len(s.ops) - 1 - last
vm = VM()

def rotate_ops():
    return [f"s_mov_b32 s{sPREV}, s{sCUR}", f"s_add_u32 s{sCUR}, s{sCUR}, {SLOT}",
            f"s_cmp_eq_u32 s{sCUR}, {SLOT*NSLOT}", f"s_cselect_b32 s{sCUR}, 0, s{sCUR}"]

def dma3(srd, v0, soff, flags=""):
    return [f"buffer_load_dwordx4 v{v0+j}, {sr(srd)}, s{soff} offen offset:{1024*j} {flags} lds" for j in range(3)]

def load_ops(kind):
    if kind is None: return []
    ops = [f"s_add_u32 m0, s{sPREV}, s{sWOFS}", "s_nop 0"]
    if kind == "W":
        ops += dma3(sWQ, vW, sSOFF) + [f"s_add_u32 s{sSOFF}, s{sSOFF}, {32*12288}"]
    elif kind == "K":
        ops += dma3(sK, vD, sSOFF2, KV_FLAGS) + [f"s_add_u32 s{sSOFF2}, s{sSOFF2}, 12288\n    s_cmp_eq_u32 s{sSOFF2}, 196608\n    s_cselect_b32 s{sSOFF2}, 0, s{sSOFF2}"]
    elif kind == "V":
        ops += dma3(sV, vD, sVOFF, KV_FLAGS) + [f"s_add_u32 s{sVOFF}, s{sVOFF}, 12288\n    s_cmp_eq_u32 s{sVOFF}, 196608\n    s_cselect_b32 s{sVOFF}, 0, s{sVOFF}"]
    elif kind[0] == "O":
        rho = int(kind[1])
        ops += dma3(sWO, vO, sSOFF)
        ops += [f"s_add_u32 s{sSOFF}, s{sSOFF}, {96*1280}"] if rho < 3 else [f"s_sub_u32 s{sSOFF}, s{sSOFF}, {3*96*1280-256}"]
    return ops

def x_ops(xslot):
    return [f"s_add_u32 m0, s{sXM0}, {xslot*16384}", "s_nop 0",
            f"buffer_load_dwordx4 v{vXO}, {sr(sX)}, s{sXOFF} offen lds",
            f"buffer_load_dwordx4 v{vXO+1}, {sr(sX)}, s{sXOFF} offen offset:1024 lds",
            f"s_add_u32 s{sXOFF}, s{sXOFF}, 128"]
def x_reads(k):
    return [f"ds_read_b128 {vr(XS[k&1]+16*u+4*s_,4)}, v{(vXB, vXA)[u]+s_} offset:{(k&1)*16384}" for s_ in range(4) for u in range(2)]

def addr_ops(kind):
    if kind == "W": return [f"v_add_u32 v{vA}, s{sCUR}, v{vWREL}", f"v_xor_b32 v{vA+1}, 16, v{vA}"]
    if kind in ("W", "V"):
        return [f"v_add_u32 v{vA}, s{sCUR}, v{vVREL}", f"v_xor_b32 v{vA+1}, 16, v{vA}",
                f"v_xor_b32 v{vA+2}, 64, v{vA}", f"v_xor_b32 v{vA+3}, 0x50, v{vA}"]
    if kind == "K":
        return [f"v_add_u32 v{vA}, s{sCUR}, v{vKREL}"] + [f"v_xor_b32 v{vA+m}, {32*m}, v{vA}" for m in range(1, 4)]
    return [f"v_add_u32 v{vA}, s{sCUR}, v{vOREL}", f"v_xor_b32 v{vA+1}, 64, v{vA}"]

def frag_reads(kind, m):
    d = AF + 4 * (m % 6)
    if kind == "W":
        if m >= 6: return []
        v, t = divmod(m, 3)
        return [f"ds_read_b64_tr_b16 {vr(d+2*q,2)}, v{vA+q} offset:{128*t + 6144*v + 1536*q}" for q in range(2)]
    if kind == "V":
        v, t = divmod(m, 6)
        return [f"ds_read_b64_tr_b16 {vr(d+2*q,2)}, v{vA + q + 2*(t&1)} offset:{128*(t>>1) + 6144*v + 1536*q}" for q in range(2)]
    if kind == "K":
        return [f"ds_read_b128 {vr(d,4)}, v{vA+(m&3)} offset:{128*(m>>2)}"]
    tn, ee = divmod(m, 6)
    return [f"ds_read_b64_tr_b16 {vr(d+2*q,2)}, v{vA+tn} offset:{4096*ee+1024*q}" for q in range(2)]

def mfma(kind, m, par):
    d = vr(AF + 4 * (m % 6), 4)
    if int(OPT.get("m16", 0)):
        def mm(a, b, z=False): return f"v_mfma_f32_16x16x32_bf16 {vr(a,4)}, {d}, {vr(b,4)}, {'0' if z else vr(a,4)}"
        if kind == "W": b = SS[par[0]] + 8 * par[1]; return mm(ACC+8*m, b) + "\n    " + mm(ACC+8*m+4, b+4)
        if kind == "V": return mm(ACC+8*m, par) + "\n    " + mm(ACC+8*m+4, par+4)
        if kind == "K": a = SS[par] + 8 * (m & 1); return mm(a, QF+8*(m>>1), m < 2) + "\n    " + mm(a+4, QF+8*(m>>1)+4, m < 2)
        a = OA + 8 * (m // 3); b = F + 24 * par + 8 * (m % 3); z = par == 0 and m % 3 == 0
        return mm(a, b, z) + "\n    " + mm(a+4, b+4, z)
    if kind == "W":
        v, t = divmod(m, 6); a = vr(ACC + 16 * t, 16); d = vr(AF + 4 * (3 * v + m % 3), 4)
        return f"v_mfma_f32_32x32x16_bf16 {a}, {d}, {vr(XS[par[0]]+16*(t//3)+4*(2*par[1]+v),4)}, {a}"
    if kind == "V":
        v, t = divmod(m, 6); a = vr(ACC + 16 * t, 16)
        return f"v_mfma_f32_32x32x16_bf16 {a}, {d}, {vr(par+4*v,4)}, {a}"
    if kind == "K":
        a = vr(SS[par], 16)
        return f"v_mfma_f32_32x32x16_bf16 {a}, {d}, {vr(QF+4*m,4)}, {'0' if m == 0 else a}"
    tn, ee = divmod(m, 6); a = vr(OA + 16 * tn, 16)
    return f"v_mfma_f32_32x32x16_bf16 {a}, {d}, {vr(F+4*(6*par+ee),4)}, {'0' if (par == 0 and ee == 0) else a}"

def spread(items, lo, hi):
    n = hi - lo + 1; d = {}
    for i, x in enumerate(items): d.setdefault(lo + i * n // max(len(items), 1), []).append(x)
    return d

def step(kind, par, nxt, n, mem, valu=None, xrd=None, pre=None):
    k0 = kind[0]; nk = nxt[0] if nxt else None
    per = 1 if k0 == "K" else 2
    q = [f"f{m}" for m in range(6) for _ in range(per)]
    valu = valu or {}
    for x in (pre or []): e(x)
    mem = list(mem)
    for m in range(12):
        tag = f"f{m}" if k0 != "W" else f"f{3*(m//6)+m%3}"
        if tag in q:
            last = max(i for i, t in enumerate(q) if t == tag)
            e(f"s_waitcnt lgkmcnt({min(15, len(q)-1-last)})")
            q = q[last + 1:]
        e(mfma(k0, m, par))
        if m < 6:
            for r in frag_reads(k0, m + 6): e(r); q.append(f"f{m+6}")
        if m == 6:
            for x in rotate_ops(): e(x)
        if m == 7 and nk:
            for x in addr_ops(nk): e(x)
        for x in valu.get(m, []): e(x)
        if m == 8:
            e(f"s_waitcnt vmcnt({n}) lgkmcnt(0)"); e("s_barrier"); q = []
            for x in (xrd or []): e(x)
            if nk:
                for mm in range(3):
                    for r in frag_reads(nk, mm): e(r)
        if m >= 9 and xrd: e("s_waitcnt lgkmcnt(12)")
        if m >= 9 and nk:
            for r in frag_reads(nk, m - 6): e(r)
        if m >= 8:
            nb = (sum(x.startswith("buffer") for x in mem) + (11 - m)) // (12 - m) if m > 8 else 0
            while mem and (m == 11 or nb > 0 or not mem[0].startswith("buffer")):
                x = mem.pop(0); e(x)
                if x.startswith("buffer"): nb -= 1

rid = [0]
def softA(S, setflag=True, nexp=8):
    rid[0] += 1; r = rid[0]
    o = [f"v_max3_f32 v{vMX}, v{S}, v{S+1}, v{S+2}"]
    o += [f"v_max3_f32 v{vMX}, v{vMX}, v{S+3+2*k}, v{S+4+2*k}" for k in range(6)]
    o += [f"v_max_f32 v{vMX}, v{vMX}, v{S+15}", f"v_mov_b32 v{vMX2}, v{vMX}\n    s_nop 1\n    v_permlane32_swap_b32 v{vMX}, v{vMX2}\n    s_nop 1",
          f"v_max_f32 v{vMX}, v{vMX}, v{vMX2}", f"v_mul_f32 v{vMX}, s{sC}, v{vMX}",
          f"v_cmp_gt_f32 vcc, v{vMX}, v{vMT}\n    s_cbranch_vccnz L_ra{r}\nL_rb{r}:\n    s_nop 0"]
    RARE.extend([f"L_ra{r}:", f"v_max_f32 v{vMX}, v{vMX}, v{vM}", f"v_sub_f32 v{vAL}, v{vM}, v{vMX}", f"v_exp_f32 v{vAL}, v{vAL}",
                 f"v_mov_b32 v{vM}, v{vMX}", f"v_add_f32 v{vMT}, s{sTMP2}, v{vMX}", f"v_mul_f32 v{vL0}, v{vL0}, v{vAL}",
                 f"v_mul_f32 v{vL1}, v{vL1}, v{vAL}"] + ([f"s_mov_b32 s{sRS}, 1"] if setflag else []) + [f"s_branch L_rb{r}"])
    o += [f"v_fma_f32 v{S+k}, v{S+k}, s{sC}, -v{vM}" for k in range(16)]
    o += [f"v_exp_f32 v{S+k}, v{S+k}" for k in range(nexp)]
    return o
def softB(S, Pd, nexp=8):
    o = [f"v_exp_f32 v{S+k}, v{S+k}" for k in range(nexp, 16)]
    for k in range(8):
        o += [f"v_cvt_pk_bf16_f32 v{Pd+k}, v{S+2*k}, v{S+2*k+1}"]
        if k < 6: o += [f"v_add_f32 v{vL0}, v{vL0}, v{S+2*k}", f"v_add_f32 v{vL1}, v{vL1}, v{S+2*k+1}"]
    for k in (6, 7): o += [f"v_add_f32 v{vL0}, v{vL0}, v{S+2*k}", f"v_add_f32 v{vL1}, v{vL1}, v{S+2*k+1}"]
    return o
def rescale_chk():
    rid[0] += 1; r = rid[0]
    RARE.extend([f"L_ra{r}:", "s_nop 15"] + [f"v_mul_f32 v{ACC+k}, v{ACC+k}, v{vAL}" for k in range(96)]
                + [f"s_mov_b32 s{sRS}, 0", "s_nop 1", f"s_branch L_rb{r}"])
    return f"s_cmp_lg_u32 s{sRS}, 0\n    s_cbranch_scc1 L_ra{r}\nL_rb{r}:\n    s_nop 0"
def merge(*ds):
    o = {}
    for d in ds:
        for k, v in d.items(): o.setdefault(k, []).extend(v)
    return o

def srd(d, ptr, off_s, nbytes):
    e(f"s_add_u32 s{d}, s{ptr}, s{off_s}")
    e(f"s_addc_u32 s{d+1}, s{ptr+1}, 0")
    e(f"s_and_b32 s{d+1}, s{d+1}, 0xffff")
    e(f"s_mov_b32 s{d+2}, {nbytes}" if isinstance(nbytes, int) else f"s_mov_b32 s{d+2}, s{nbytes[0]}")
    e(f"s_mov_b32 s{d+3}, 0x20000")

def swz(dst, r, tmp):
    e(f"v_bfe_u32 v{dst}, v{r}, 2, 2")
    e(f"v_bfe_u32 v{tmp}, v{r}, 1, 1")
    e(f"v_lshl_or_b32 v{dst}, v{tmp}, 2, v{dst}")

def kernel1():
    K1 = "attn_kernel"
    L.append(f".globl {K1}\n.p2align 8\n.type {K1},@function\n{K1}:")
    e(f"s_cmp_ge_u32 s2, {0 if int(OPT.get('empty',0))&1 else 256}")
    e("s_cbranch_scc1 L_end")
    if OPT.get("halfwg"):
        e(f"s_and_b32 s3, s2, {OPT['halfwg']}"); e("s_cbranch_scc1 L_end")
    e(f"s_load_dwordx16 s[{sPTR}:{sPTR+15}], s[0:1], 0")
    e(f"s_load_dwordx8 s[{sPTR+16}:{sPTR+23}], s[0:1], 64")
    e(f"s_load_dwordx2 s[{sPTR+24}:{sPTR+25}], s[0:1], 96")
    stamp()
    e(f"v_lshrrev_b32 v{vT0}, 6, v0")
    e(f"v_and_b32 v{vLANE}, 63, v0")
    e(f"v_readfirstlane_b32 s{sW}, v{vT0}")
    e(f"v_lshrrev_b32 v{vHF}, 5, v{vLANE}")
    e(f"s_bfe_u32 s{sBLK}, s2, 0x10002")
    e(f"s_bfe_u32 s{sB}, s2, 0x30005")
    e(f"s_and_b32 s{sHP}, s2, 3")
    e(f"s_lshl_b32 s{sHP}, s{sHP}, 2")
    e(f"s_bfe_u32 s{sTMP}, s2, 0x20003")
    e(f"s_add_u32 s{sHP}, s{sHP}, s{sTMP}")
    e(f"s_lshr_b32 s{sHALF}, s{sW}, 2")
    e(f"s_and_b32 s{sQG}, s{sW}, 3")
    e(f"s_lshl_b32 s{sH}, s{sHP}, 1")
    e(f"s_add_u32 s{sH}, s{sH}, s{sHALF}")
    e(f"s_mul_i32 s{sWOFS}, s{sW}, 3072")
    e(f"s_lshl_b32 s{sXM0}, s{sW}, 11")
    e(f"s_add_u32 s{sXM0}, s{sXM0}, {XA}")
    e(f"s_mov_b32 s{sC}, 0x{f32hex(192**-0.5 * 1.4426950408889634)}")
    e(f"s_mov_b32 s{sTMP2}, 0x41000000")
    e(f"s_mul_i32 s{sTMP}, s{sQG}, 24")
    for j in range(3):
        e(f"v_lshrrev_b32 v{vT0}, 3, v{vLANE}")
        e(f"v_add_u32 v{vT0}, s{sTMP}, v{vT0}")
        if j: e(f"v_add_u32 v{vT0}, {8*j}, v{vT0}")
        e(f"v_mul_u32_u24 v{vT1}, 43, v{vT0}")
        e(f"v_lshrrev_b32 v{vT1}, 7, v{vT1}")
        swz(vT2, vT1, vT3)
        e(f"v_and_b32 v{vT3}, 7, v{vLANE}")
        e(f"v_xor_b32 v{vT2}, v{vT2}, v{vT3}")
        e(f"v_lshlrev_b32 v{vT2}, 4, v{vT2}")
        e(f"v_lshl_add_u32 v{vD+j}, v{vT0}, 7, v{vT2}")
        if j: e(f"v_subrev_u32 v{vD+j}, {1024*j}, v{vD+j}")
        e(f"v_mul_u32_u24 v{vT1}, {12288-384}, v{vT1}")
        e(f"v_add_u32 v{vW+j}, v{vD+j}, v{vT1}")
    e(f"v_lshrrev_b32 v{vT0}, 4, v{vLANE}")
    e(f"v_lshlrev_b32 v{vT1}, 2, v{vT0}")
    e(f"v_and_b32 v{vT2}, 15, v{vLANE}")
    e(f"v_xor_b32 v{vT1}, v{vT1}, v{vT2}")
    e(f"v_lshlrev_b32 v{vT1}, 4, v{vT1}")
    e(f"s_mul_i32 s{sTMP}, s{sW}, 12")
    e(f"v_add_u32 v{vT0}, s{sTMP}, v{vT0}")
    e(f"v_mul_u32_u24 v{vT0}, 1280, v{vT0}")
    e(f"v_add_u32 v{vO}, v{vT0}, v{vT1}")
    e(f"v_add_u32 v{vO+1}, {4*1280-1024}, v{vO}")
    e(f"v_add_u32 v{vO+2}, {2*(4*1280-1024)}, v{vO}")
    for pj in range(2):
        e(f"v_lshrrev_b32 v{vT0}, 4, v{vLANE}")
        if pj: e(f"v_add_u32 v{vT0}, 4, v{vT0}")
        e(f"v_and_b32 v{vT1}, 7, v{vLANE}")
        e(f"v_xor_b32 v{vT1}, v{vT1}, v{vT0}")
        e(f"v_lshlrev_b32 v{vT1}, 4, v{vT1}")
        e(f"s_lshl_b32 s{sTMP}, s{sW}, 4")
        e(f"v_lshrrev_b32 v{vT0}, 3, v{vLANE}")
        e(f"v_add_u32 v{vT0}, s{sTMP}, v{vT0}")
        e(f"v_mul_u32_u24 v{vT0}, 1280, v{vT0}")
        e(f"v_add_u32 v{vXO+pj}, v{vT0}, v{vT1}")
        if pj: e(f"v_add_u32 v{vXO+pj}, {8*1280-1024}, v{vXO+pj}")
    e("s_waitcnt lgkmcnt(0)")
    e(f"s_cmp_eq_u32 s{sBLK}, 0")
    for k in range(5):
        e(f"s_cselect_b64 s[{sPTR+2*k}:{sPTR+2*k+1}], s[{sPTR+2*k}:{sPTR+2*k+1}], s[{sPTR+10+2*k}:{sPTR+11+2*k}]")
    e(f"s_mul_i32 s{sTMP}, s{sB}, 163840"); srd(sX, sPTR, sTMP, 163840)
    e(f"s_mul_i32 s{sTMP}, s{sH}, 384")
    e(f"s_sub_u32 s{sCNT}, {640*12288}, s{sTMP}"); srd(sWQ, sPTR+6, sTMP, (sCNT,))
    e(f"s_mov_b32 s{sSOFF}, 0"); e(f"s_mov_b32 s{sXOFF}, 0"); e(f"s_mov_b32 s{sSOFF2}, 0"); e(f"s_mov_b32 s{sVOFF}, 0"); e(f"s_mov_b32 s{sRS}, 0")
    for i in range(LA):
        e(f"s_mov_b32 s{sPREV}, {SLOT*i}")
        if i < 2:
            for x in x_ops(i): e(x)
            vm.issue(f"x{i}", 2)
        for x in load_ops("W"): e(x)
        vm.issue(f"t{i}", 3)
    if WARM:
        e(f"v_mul_u32_u24 v{vT0}, 171, v0"); e(f"v_lshrrev_b32 v{vT0}, 10, v{vT0}")
        e(f"v_mul_u32_u24 v{vT1}, {12288-768}, v{vT0}")
        e(f"v_lshlrev_b32 v{vPFA}, 7, v0")
        e(f"v_add_u32 v{vPFW}, v{vT1}, v{vPFA}")
        e(f"s_mul_i32 s{sTMP}, s{sHP}, 768"); e(f"s_mul_i32 s{sCNT}, s{sB}, {20*12288}"); e(f"s_add_u32 s{sTMP}, s{sTMP}, s{sCNT}")
        e(f"s_add_u32 s{sTMP}, s{sTMP}, {160*12288}")
        srd(sWO, sPTR+6, sTMP, 19*12288+768)
        e(f"buffer_load_dword v{vPF}, v{vPFW}, {sr(sWO)}, 0 offen")
        e(f"s_add_u32 s{sTMP}, s{sTMP}, s{sCNT}"); e(f"s_add_u32 s{sTMP}, s{sTMP}, {160*12288}")
        srd(sPF, sPTR+6, sTMP, 39*12288+768)
        vm.issue("pf", 1)
    e(f"s_mov_b32 s{sCUR}, 0")
    ROT = int(OPT.get("rot", 1))
    if ROT:
        if ROT == 1:
            e(f"s_lshl_b32 s{sTMP}, s{sB}, 1"); e(f"s_add_u32 s{sTMP}, s{sTMP}, s{sH}"); e(f"s_add_u32 s{sTMP}, s{sTMP}, s{sBLK}")
        elif ROT == 2:
            e(f"s_mul_i32 s{sTMP}, s{sB}, 3"); e(f"s_mul_i32 s{sCNT}, s{sH}, 5"); e(f"s_add_u32 s{sTMP}, s{sTMP}, s{sCNT}")
            e(f"s_lshl_b32 s{sCNT}, s{sBLK}, 3"); e(f"s_add_u32 s{sTMP}, s{sTMP}, s{sCNT}")
        elif ROT == 3:
            e(f"s_lshl_b32 s{sTMP}, s{sB}, 1"); e(f"s_add_u32 s{sTMP}, s{sTMP}, s{sHP}")
        e(f"s_and_b32 s{sTMP}, s{sTMP}, 15"); e(f"s_mul_i32 s{sSOFF2}, s{sTMP}, 12288"); e(f"s_mov_b32 s{sVOFF}, s{sSOFF2}")
    e(f"s_lshl_b32 s{sTMP}, s{sB}, 5")
    e(f"s_add_u32 s{sTMP}, s{sTMP}, s{sH}")
    e(f"s_mul_i32 s{sTMP}, s{sTMP}, 196608")
    srd(sK, sPTR+2, sTMP, 196608); srd(sV, sPTR+4, sTMP, 196608)
    e(f"s_mul_i32 s{sTMP}, s{sHP}, 491520"); srd(sWO, sPTR+8, sTMP, 491520)
    e(f"s_lshl_b32 s{sTMP}, s{sBLK}, 3"); e(f"s_add_u32 s{sTMP}, s{sTMP}, s{sB}")
    e(f"s_lshl_b32 s{sTMP}, s{sTMP}, 4"); e(f"s_add_u32 s{sTMP}, s{sTMP}, s{sHP}")
    e(f"s_mul_i32 s{sTMP}, s{sTMP}, 163840")
    e(f"s_mul_i32 s{sCNT}, s{sQG}, 40960"); e(f"s_add_u32 s{sTMP}, s{sTMP}, s{sCNT}")
    srd(sWS, sPTR+24, sTMP, 40960)
    e(f"s_lshl_b32 s{sSTO}, s{sHALF}, 12")
    e(f"v_lshlrev_b32 v{vST}, 4, v{vLANE}")
    e(f"s_mul_i32 s{sTMP}, s{sHALF}, 12288")
    e(f"v_and_b32 v{vT0}, 0x13, v{vLANE}")
    e(f"v_bfe_u32 v{vT1}, v{vLANE}, 2, 1"); e(f"v_lshl_or_b32 v{vT0}, v{vT1}, 3, v{vT0}")
    e(f"v_bfe_u32 v{vT1}, v{vLANE}, 3, 1"); e(f"v_lshl_or_b32 v{vT0}, v{vT1}, 2, v{vT0}")
    swz(vT1, vT0, vT2)
    e(f"v_xor_b32 v{vT1}, v{vT1}, v{vHF}")
    e(f"v_lshlrev_b32 v{vT1}, 4, v{vT1}")
    e(f"v_mul_u32_u24 v{vT0}, 384, v{vT0}")
    e(f"v_add3_u32 v{vKREL}, v{vT0}, v{vT1}, s{sTMP}")
    e(f"s_and_b32 s{sCNT}, s{sQG}, 1"); e(f"s_lshl_b32 s{sCNT}, s{sCNT}, 6")
    e(f"v_xor_b32 v{vKREL}, s{sCNT}, v{vKREL}")
    e(f"v_bfe_u32 v{vT0}, v{vLANE}, 2, 2")
    e(f"v_lshl_add_u32 v{vT0}, v{vHF}, 3, v{vT0}")
    e(f"v_mul_u32_u24 v{vT0}, 384, v{vT0}")
    e(f"v_bfe_u32 v{vT1}, v{vLANE}, 3, 1"); e(f"v_lshl_add_u32 v{vT0}, v{vT1}, 6, v{vT0}")
    e(f"v_bfe_u32 v{vT1}, v{vLANE}, 4, 1"); e(f"v_xor_b32 v{vT1}, v{vT1}, v{vHF}"); e(f"v_lshl_add_u32 v{vT0}, v{vT1}, 5, v{vT0}")
    e(f"v_and_b32 v{vT1}, 1, v{vLANE}"); e(f"v_lshl_add_u32 v{vT0}, v{vT1}, 4, v{vT0}")
    e(f"v_bfe_u32 v{vT1}, v{vLANE}, 1, 1"); e(f"v_lshl_add_u32 v{vT0}, v{vT1}, 3, v{vT0}")
    e(f"v_add_u32 v{vVREL}, s{sTMP}, v{vT0}")
    e(f"v_xor_b32 v{vWREL}, s{sCNT}, v{vVREL}")
    e(f"v_bfe_u32 v{vT0}, v{vLANE}, 2, 2")
    e(f"v_lshlrev_b32 v{vT2}, 2, v{vT0}")
    e(f"v_lshl_add_u32 v{vT0}, v{vHF}, 3, v{vT0}")
    e(f"v_lshlrev_b32 v{vT0}, 8, v{vT0}")
    e(f"v_bfe_u32 v{vT1}, v{vLANE}, 4, 1"); e(f"v_lshlrev_b32 v{vT1}, 1, v{vT1}")
    e(f"v_and_b32 v{vT3}, 1, v{vLANE}"); e(f"v_or_b32 v{vT1}, v{vT1}, v{vT3}")
    e(f"s_lshl_b32 s{sTMP}, s{sHALF}, 3")
    e(f"v_or_b32 v{vT1}, s{sTMP}, v{vT1}")
    e(f"v_xor_b32 v{vT1}, v{vT1}, v{vT2}")
    e(f"v_lshl_add_u32 v{vT0}, v{vT1}, 4, v{vT0}")
    e(f"v_bfe_u32 v{vT1}, v{vLANE}, 1, 1"); e(f"v_lshl_add_u32 v{vOREL}, v{vT1}, 3, v{vT0}")
    e(f"v_and_b32 v{vT0}, 31, v{vLANE}")
    e(f"v_bfe_u32 v{vT1}, v{vLANE}, 1, 3")
    e(f"v_xor_b32 v{vT1}, v{vT1}, v{vHF}")
    e(f"v_lshlrev_b32 v{vT1}, 4, v{vT1}")
    e(f"v_lshl_add_u32 v{vT0}, v{vT0}, 7, v{vT1}")
    e(f"s_lshl_b32 s{sTMP}, s{sQG}, 12"); e(f"s_add_u32 s{sTMP}, s{sTMP}, {XA}")
    e(f"v_add_u32 v{vXA}, s{sTMP}, v{vT0}")
    for m in range(1, 4): e(f"v_xor_b32 v{vXA+m}, {32*m}, v{vXA}")
    for m in range(4): e(f"v_xor_b32 v{vXB+m}, 0x1000, v{vXA+m}")
    e(f"s_mul_i32 s{sCNT}, s{sW}, 6144"); e(f"s_add_u32 s{sCNT}, s{sCNT}, {QXB}"); e(f"v_add_u32 v{vQW}, s{sCNT}, v{vST}")
    e(f"s_xor_b32 s{sCNT}, s{sW}, 1"); e(f"s_mul_i32 s{sCNT}, s{sCNT}, 6144"); e(f"s_add_u32 s{sCNT}, s{sCNT}, {QXB}"); e(f"v_add_u32 v{vQR}, s{sCNT}, v{vST}")
    e(f"v_add_u32 v{vEXR}, s{sTMP}, v{vST}")
    e(f"s_lshl_b32 s{sTMP}, s{sW}, 12"); e(f"s_add_u32 s{sTMP}, s{sTMP}, {XA}")
    e(f"v_add_u32 v{vEX}, s{sTMP}, v{vST}")
    for r in range(96): e(f"v_mov_b32 v{ACC+r}, 0")
    e(f"v_mov_b32 v{vM}, 0xf149f2ca"); e(f"v_mov_b32 v{vMT}, 0xf149f2ca")
    e(f"v_mov_b32 v{vL0}, 0"); e(f"v_mov_b32 v{vL1}, 0")


    kinds = ["W"] * 20 + ["K", "K"] + ["V", "K"] * 14 + ["V", "V"] + ["O0", "O1", "O2", "O3"] * 5
    NT = len(kinds); assert NT == 72
    WOPF = 46
    first = vm.need(["t0", "x0"])
    if WARM: vm.issue("pf", 2)
    waits = []
    for i in range(NT):
        if kinds[i] == "O0": vm.issue("st", 2)
        need = ([f"t{i+1}"] if i + 1 < NT + 1 else []) + ([f"x{(i+1)//2}"] if i < 18 and i % 2 == 1 else [])
        waits.append(vm.need(need) - (int(OPT.get("tight", 0)) if 20 <= i < 46 else 0))
        if i < 16 and i % 2 == 0: vm.issue(f"x{i//2+2}", 2)
        if i == 20: vm.issue("t24", 3)
        if i != 19: vm.issue(f"t{i+LA}", 3)
        if i == WOPF and WARM: vm.issue("pf", 1)
        if KVPF and i < max(12, KVPF): vm.issue("pf", 1)
        if kinds[i] == "O3": vm.issue("st", 2)
    kx = kinds + ["O0", "O1", "O2", "O3", "O0", "O1"]
    def same(idx, stride, cnt): return min(waits[idx + stride * k] for k in range(cnt))
    def qstep(i, n):
        k = i // 2
        mem = (x_ops(k & 1) if (i < 16 and i % 2 == 0) else []) + (load_ops(kx[i + LA]) if i != 19 else [])
        if KVPF and i < max(12, KVPF):
            mem += [f"buffer_load_dword v7, v{vPFK}, {sr(sPF)}, s{sPFO} offen {PF_FLAGS}",
                    f"s_cmp_lg_u32 s{sPF+2}, 0\n    s_cselect_b32 s{sTMP}, {16384 >> PFSH}, 0\n    s_add_u32 s{sPFO}, s{sPFO}, s{sTMP}\n    s_cmp_eq_u32 s{sPFO}, 196608\n    s_cselect_b32 s{sPFO}, 0, s{sPFO}"]
            if i == 3 and PFS: mem += [f"s_cmp_eq_u32 s{sCNT}, {4-PFS}\n    s_cselect_b32 s{sPF+2}, 196608, s{sPF+2}"]
        valu = {}
        if i == 19:
            for t in range(3): valu[9 + t] = [f"v_cvt_pk_bf16_f32 v{QF+16*t+8+j}, v{ACC+16*t+2*j}, v{ACC+16*t+2*j+1}" for j in range(8)]
        step("W", (k & 1, i & 1), kx[i + 1], n, mem, valu, x_reads(k + 1) if (i < 18 and i % 2 == 1) else None)
    cm("Q phase")
    if PRIO:
        e(f"s_cmp_eq_u32 s{sHALF}, 0"); e("s_cbranch_scc1 L_np"); e("s_setprio 1"); lab("L_np")
    for x in addr_ops("W"): e(x)
    e(f"s_waitcnt vmcnt({first})"); e("s_barrier")
    stamp()
    for x in x_reads(0): e(x)
    if WARM:
        e(f"s_bfe_u32 s{sTMP}, s2, 0x20003"); e(f"s_mul_i32 s{sTMP}, s{sTMP}, 40960")
        e(f"buffer_load_dword v7, v{vPFA}, {sr(sX)}, s{sTMP} offen")
        e(f"buffer_load_dword v{vPF}, v{vPFW}, {sr(sPF)}, 0 offen")
    if KVPF:
        e(f"s_and_b32 s{sTMP}, s{sQG}, 1"); e(f"s_cmp_eq_u32 s{sTMP}, 0")
        e(f"s_cselect_b32 s{sPF}, s{sK}, s{sV}"); e(f"s_cselect_b32 s{sPF+1}, s{sK+1}, s{sV+1}")
        e(f"s_mov_b32 s{sPF+2}, {196608 if PFS == 0 else 0}"); e(f"s_mov_b32 s{sPF+3}, 0x20000")
        e(f"s_lshr_b32 s{sTMP}, s{sQG}, 1"); e(f"s_lshl_b32 s{sTMP}, s{sTMP}, {13-PFSH}")
        e(f"s_add_u32 s{sPFO}, s{sVOFF}, {PFO}"); e(f"s_sub_u32 s{sCNT}, s{sPFO}, 196608"); e(f"s_cmp_ge_u32 s{sPFO}, 196608"); e(f"s_cselect_b32 s{sPFO}, s{sCNT}, s{sPFO}")
        e(f"v_lshrrev_b32 v{vPFK}, {PFSH}, v{vLANE}"); e(f"v_lshlrev_b32 v{vPFK}, 7, v{vPFK}"); e(f"v_add_u32 v{vPFK}, s{sTMP}, v{vPFK}")
    e("s_waitcnt lgkmcnt(2)")
    for m in range(6):
        for r in frag_reads("W", m): e(r)
    e(f"s_mov_b32 s{sCNT}, 3")
    lab("L_q")
    for k in range(4): qstep(k, same(k, 4, 3))
    e(f"s_sub_u32 s{sCNT}, s{sCNT}, 1"); e(f"s_cmp_lg_u32 s{sCNT}, 0"); e("s_cbranch_scc1 L_q")
    for i in range(12, 20): qstep(i, waits[i])
    e(f"s_mov_b32 s{sSOFF}, 0")
    cm("attention phase")
    if PROF: stamp()
    for f in range(6): e(f"ds_write_b128 v{vQW}, {vr(QF+16*(f//2)+8+4*(f&1),4)} offset:{1024*f}")
    for t in range(2):
        for j in range(8): e(f"v_cvt_pk_bf16_f32 v{QF+16*t+j}, v{ACC+48+16*t+2*j}, v{ACC+48+16*t+2*j+1}")
    e("s_waitcnt lgkmcnt(0)"); e("s_barrier")
    for f in range(6): e(f"ds_read_b128 {vr(QF+16*(f//2)+8+4*(f&1),4)}, v{vQR} offset:{1024*f}")
    for j in range(8): e(f"v_cvt_pk_bf16_f32 v{QF+32+j}, v{ACC+80+2*j}, v{ACC+80+2*j+1}")
    z = [f"v_mov_b32 v{ACC+r}, 0" for r in range(96)]
    for x in z[:24]: e(x)
    e("s_waitcnt lgkmcnt(0)")
    t24 = load_ops(kx[24]); t24[0] = f"s_add_u32 m0, s{sWOFS}, {4*SLOT}"
    step("K", 0, "K", waits[20], t24 + load_ops(kx[25]), spread(z[24:], 0, 11))
    step("K", 1, "V", waits[21], load_ops(kx[26]), spread(softA(SS[0], False) + softB(SS[0], P), 2, 11))
    def av(i, n, sidx, extra=[]):
        step("V", P, kx[i + 1], n, load_ops(kx[i + LA]) + extra, spread(softA(SS[sidx]), 2, 11), pre=["s_nop 0"])
    def ak(i, n, sidx):
        step("K", sidx, kx[i + 1], n, load_ops(kx[i + LA]), merge({2: [rescale_chk()]}, spread(softB(SS[1 - sidx], P), 0, 11)))
    e(f"s_mov_b32 s{sCNT}, 6")
    lab("L_a")
    av(22, same(22, 4, 6), 1); ak(23, same(23, 4, 6), 0); av(24, same(24, 4, 6), 0); ak(25, same(25, 4, 6), 1)
    e(f"s_sub_u32 s{sCNT}, s{sCNT}, 1"); e(f"s_cmp_lg_u32 s{sCNT}, 0"); e("s_cbranch_scc1 L_a")
    pf = [f"s_mul_i32 s{sTMP}, s{sB}, 61440", f"buffer_load_dword v{vPF}, v{vPFA}, {sr(sWO)}, s{sTMP} offen"] if WARM else []
    av(46, waits[46], 1, pf); ak(47, waits[47], 0); av(48, waits[48], 0); ak(49, waits[49], 1)
    step("V", P, "V", waits[50], load_ops(kx[55]), spread(softA(SS[1]) + softB(SS[1], SS[0]), 2, 11), pre=["s_nop 0"])
    step("V", SS[0], "O0", waits[51], load_ops(kx[56]), pre=[rescale_chk()])
    cm("normalise + exchange")
    if PROF: stamp()
    e(f"v_add_f32 v{vL0}, v{vL0}, v{vL1}")
    e(f"v_mov_b32 v{vL1}, v{vL0}")
    e("s_nop 1")
    e(f"v_permlane32_swap_b32 v{vL0}, v{vL1}")
    e("s_nop 1")
    e(f"v_add_f32 v{vL0}, v{vL0}, v{vL1}")
    e(f"v_rcp_f32 v{vMX}, v{vL0}")
    e("s_nop 7")
    e(f"v_mov_b32 v{vMX+1}, v{vMX}")
    for rho in range(3):
        for r in range(16): e(f"v_pk_mul_f32 {vr(ACC+32*rho+2*r,2)}, {vr(ACC+32*rho+2*r,2)}, {vr(vMX,2)}")
        for k in range(16): e(f"v_cvt_pk_bf16_f32 v{QF+16*rho+k}, v{ACC+32*rho+2*k}, v{ACC+32*rho+2*k+1}")
        if rho == 0:
            for f in range(4): e(f"ds_write_b128 v{vEX}, {vr(QF+4*f,4)} offset:{1024*f}")
    if DEBUG == 2: dump(QF, 12)
    for rho in range(3):
        if rho:
            for f in range(4): e(f"ds_write_b128 v{vEX}, {vr(QF+16*rho+4*f,4)} offset:{1024*f}")
        e("s_waitcnt lgkmcnt(0)"); e("s_barrier")
        for f in range(4):
            e(f"ds_read_b128 {vr(F+16*rho+4*f,4)}, v{vEXR} offset:{1024*f}")
            e(f"ds_read_b128 {vr(F+48+16*rho+4*f,4)}, v{vEXR} offset:{16384+1024*f}")
        e("s_waitcnt lgkmcnt(0)")
        if rho < 2: e("s_barrier")
    cm("O phase")
    if PROF: stamp()
    def ocv(tn, so):
        o = [f"v_cvt_pk_bf16_f32 v{OP+8*tn+k}, v{OA+16*tn+2*k}, v{OA+16*tn+2*k+1}" for k in range(8)]
        return o + [f"buffer_store_dwordx4 {vr(OP+8*tn+4*k,4)}, v{vST}, {sr(sWS)}, s{so} offen offset:{2048*tn+1024*k} {ST_FLAGS}".rstrip() for k in range(2)]
    e(f"s_mov_b32 s{sSTO2}, 0x100000")
    e(f"s_mov_b32 s{sCNT}, 5")
    lab("L_o")
    for rho in range(4):
        valu = {}; mem = load_ops(f"O{(rho+1)%4}")
        if rho == 0: valu = spread(ocv(1, sSTO2), 2, 5)
        if rho == 3:
            mem = [f"s_cmp_le_u32 s{sCNT}, 2", f"s_cselect_b32 s{sWO+2}, 0, s{sWO+2}"] + mem + ocv(0, sSTO)[8:] + [f"s_mov_b32 s{sSTO2}, s{sSTO}", f"s_add_u32 s{sSTO}, s{sSTO}, 8192"]
            valu = spread(ocv(0, sSTO)[:8], 8, 9)
        step("O", rho, "O", same(52 + rho, 4, 5), mem, valu)
    e(f"s_sub_u32 s{sCNT}, s{sCNT}, 1"); e(f"s_cmp_lg_u32 s{sCNT}, 0"); e("s_cbranch_scc1 L_o")
    e("s_nop 15")
    for x in ocv(1, sSTO2): e(x)
    stamp()
    if FUSE: fused_reduce()
    stamp_out()
    lab("L_end")
    e("s_endpgm")
    for x in RARE: e(x)
    return K1

def fused_reduce():
    cm("fused reduction over the 16 head-pair partials of (blk,b); this WG owns chunks 10hp..10hp+9")
    sG, sR, sLO, sHI = sCUR, sPREV, sSOFF, sSOFF2
    e(f"s_lshl_b32 s{sG}, s{sBLK}, 3"); e(f"s_add_u32 s{sG}, s{sG}, s{sB}")
    e(f"s_lshl_b32 s{sTMP}, s{sG}, 4"); srd(sK, sPTR+22, sTMP, 16)
    e(f"s_mul_i32 s{sR}, s{sHP}, 10"); e(f"s_add_u32 s{sR}, s{sR}, s{sW}")
    e(f"s_mul_i32 s{sTMP}, s{sG}, 2621440"); e(f"s_lshl_b32 s{sCNT}, s{sR}, 10"); e(f"s_add_u32 s{sTMP}, s{sTMP}, s{sCNT}")
    srd(sV, sPTR+24, sTMP, 15*163840+9216)
    e(f"s_mul_i32 s{sTMP}, s{sB}, {128*2560}"); e(f"s_mul_i32 s{sCNT}, s{sBLK}, 1280"); e(f"s_add_u32 s{sTMP}, s{sTMP}, s{sCNT}")
    srd(sWQ, sPTR+20, sTMP, 128*2560-1280)
    e(f"v_and_b32 v4, 31, v{vLANE}"); e("v_mul_u32_u24 v4, 2560, v4"); e(f"v_lshl_add_u32 v4, v{vHF}, 4, v4")
    e(f"s_mov_b32 s{sLO}, 0x3f80"); e(f"s_mov_b32 s{sHI}, 0x3f800000")
    for r in range(16, 32): e(f"v_mov_b32 v{r}, 0")
    e("v_mov_b32 v5, 0"); e("v_mov_b32 v6, 1")
    e("s_waitcnt vmcnt(0)"); e("s_barrier")
    e(f"s_cmp_lg_u32 s{sW}, 0"); e("s_cbranch_scc1 L_rj")
    e("s_mov_b64 exec, 1")
    e(f"buffer_atomic_add v6, v5, {sr(sK)}, 0 offen sc0 sc1")
    e("s_waitcnt vmcnt(0)"); e("v_add_u32 v6, 1, v6")
    lab("L_rp")
    e("v_cmp_gt_u32 vcc, 16, v6"); e("s_cbranch_vccz L_rq")
    e("s_sleep 2")
    e(f"buffer_load_dword v6, v5, {sr(sK)}, 0 offen sc1")
    e("s_waitcnt vmcnt(0)"); e("s_branch L_rp")
    lab("L_rq")
    e("s_mov_b64 exec, -1")
    lab("L_rj")
    e("s_barrier")
    def loads(c):
        for hp in range(16):
            e(f"s_mov_b32 s{sTMP}, {hp*163840+8192*c}")
            e(f"buffer_load_dwordx4 {vr(48+64*c+4*hp,4)}, v{vST}, {sr(sV)}, s{sTMP} offen sc1")
    def summ(c, extra):
        a = 16 + 8 * c
        e(f"s_mul_i32 s{sTMP}, s{sR}, 1639"); e(f"s_lshr_b32 s{sTMP}, s{sTMP}, 16")
        e(f"s_mul_i32 s{sCNT}, s{sTMP}, {81920-1280}"); e(f"s_lshl_b32 s{sTMP}, s{sR}, 5"); e(f"s_add_u32 s{sCNT}, s{sCNT}, s{sTMP}")
        for hp in range(16):
            e(f"s_waitcnt vmcnt({15-hp+extra})")
            for k in range(4):
                e(f"v_dot2c_f32_bf16 v{a+2*k}, s{sLO}, v{48+64*c+4*hp+k}"); e(f"v_dot2c_f32_bf16 v{a+2*k+1}, s{sHI}, v{48+64*c+4*hp+k}")
        e("s_nop 2")
        for k in range(4): e(f"v_cvt_pk_bf16_f32 v{32+4*c+k}, v{a+2*k}, v{a+2*k+1}")
        e(f"buffer_store_dwordx4 {vr(32+4*c,4)}, v4, {sr(sWQ)}, s{sCNT} offen")
    loads(0)
    e(f"s_cmp_lt_u32 s{sW}, 2"); e("s_cbranch_scc1 L_r2")
    summ(0, 0)
    e("s_branch L_r3")
    lab("L_r2")
    loads(1); summ(0, 16)
    e(f"s_add_u32 s{sR}, s{sR}, 8")
    summ(1, 1)
    lab("L_r3")

def dump(base, nfrag):
    e(f"s_lshl_b32 s{sTMP}, s2, 3"); e(f"s_add_u32 s{sTMP}, s{sTMP}, s{sW}")
    e(f"s_mul_i32 s{sTMP}, s{sTMP}, {nfrag*1024}")
    e(f"s_add_u32 s{sTMP}, s{sTMP}, 0x4000000")
    srd(sWS, sPTR+24, sTMP, nfrag*1024)
    for f in range(nfrag):
        e(f"s_mov_b32 s{sTMP}, {1024*f}")
        e(f"buffer_store_dwordx4 {vr(base+4*f,4)}, v{vST}, {sr(sWS)}, s{sTMP} offen")
    e("s_waitcnt vmcnt(0)")
    e("s_endpgm")

def kernel2():
    K2 = "reduce_kernel"
    L.append(f".globl {K2}\n.p2align 8\n.type {K2},@function\n{K2}:")
    e(f"s_cmp_ge_u32 s2, {0 if int(OPT.get('empty',0))&2 else 640}")
    e("s_cbranch_scc1 L_end2")
    e("s_load_dwordx2 s[4:5], s[0:1], 80")
    e("s_load_dwordx2 s[6:7], s[0:1], 96")
    e("s_mul_i32 s16, s2, 1639"); e("s_lshr_b32 s16, s16, 16")
    e("s_mul_i32 s17, s16, 40"); e("s_sub_u32 s17, s2, s17")
    e("v_lshrrev_b32 v1, 6, v0")
    e("s_nop 0")
    e("v_readfirstlane_b32 s18, v1")
    e("s_lshl_b32 s17, s17, 2")
    e("s_nop 1")
    e("s_add_u32 s17, s17, s18")
    e("v_and_b32 v2, 63, v0")
    e("v_lshlrev_b32 v3, 4, v2")
    e("s_mul_i32 s19, s16, 2621440")
    e("s_lshl_b32 s20, s17, 10"); e("s_add_u32 s19, s19, s20")
    e("s_waitcnt lgkmcnt(0)")
    e("s_add_u32 s8, s6, s19"); e("s_addc_u32 s9, s7, 0"); e("s_and_b32 s9, s9, 0xffff")
    e(f"s_mov_b32 s10, {15*163840+1024}"); e("s_mov_b32 s11, 0x20000")
    e("s_mov_b32 s21, 0")
    for hp in range(16):
        e(f"buffer_load_dwordx4 {vr(16+4*hp,4)}, v3, s[8:11], s21 offen {RD_FLAGS}".rstrip())
        if hp < 15: e("s_add_u32 s21, s21, 163840")
    e("s_mov_b32 s12, s4"); e("s_and_b32 s13, s5, 0xffff"); e("s_mov_b32 s14, 2621440"); e("s_mov_b32 s15, 0x20000")
    e("s_mul_i32 s22, s17, 1639"); e("s_lshr_b32 s22, s22, 16")
    e("s_mul_i32 s23, s22, 40"); e("s_sub_u32 s23, s17, s23")
    e("s_and_b32 s24, s16, 7"); e("s_lshl_b32 s24, s24, 2"); e("s_add_u32 s24, s24, s22")
    e("s_mul_i32 s24, s24, 81920")
    e("s_lshr_b32 s25, s16, 3"); e("s_mul_i32 s25, s25, 1280"); e("s_add_u32 s24, s24, s25")
    e("s_lshl_b32 s23, s23, 5"); e("s_add_u32 s24, s24, s23")
    e("v_and_b32 v4, 31, v2"); e("v_mul_u32_u24 v4, 2560, v4")
    e("v_lshrrev_b32 v5, 5, v2"); e("v_lshl_add_u32 v4, v5, 4, v4")
    e("s_mov_b32 s26, 0xffff0000")
    for hp in range(16):
        e(f"s_waitcnt vmcnt({15-hp})")
        for k in range(4):
            src = 16 + 4 * hp + k
            if hp == 0:
                e(f"v_lshlrev_b32 v{8+2*k}, 16, v{src}"); e(f"v_and_b32 v{9+2*k}, s26, v{src}")
            else:
                e(f"v_lshlrev_b32 v6, 16, v{src}"); e(f"v_and_b32 v7, s26, v{src}")
                e(f"v_add_f32 v{8+2*k}, v{8+2*k}, v6"); e(f"v_add_f32 v{9+2*k}, v{9+2*k}, v7")
    for k in range(4): e(f"v_cvt_pk_bf16_f32 v{16+k}, v{8+2*k}, v{9+2*k}")
    e("buffer_store_dwordx4 v[16:19], v4, s[12:15], s24 offen")
    lab("L_end2")
    e("s_endpgm")
    return K2

import struct
def f32hex(x): return "%08x" % struct.unpack("<I", struct.pack("<f", x))[0]

def desc(name, nv, ns):
    return f""".amdhsa_kernel {name}
  .amdhsa_next_free_vgpr {nv}
  .amdhsa_next_free_sgpr {ns}
  .amdhsa_accum_offset {(nv+3)//4*4}
  .amdhsa_group_segment_fixed_size 0
  .amdhsa_kernarg_size 104
  .amdhsa_user_sgpr_count 2
  .amdhsa_user_sgpr_kernarg_segment_ptr 1
  .amdhsa_system_sgpr_workgroup_id_x 1
.end_amdhsa_kernel"""

head = open(f"cdna_kernels/{NAME}.s.ref").read().split("; Override launch")[0]
k1 = kernel1(); k2 = None if FUSE else kernel2()
txt = head
txt += f"; @launch kernel={k1} grid=(256,1,1) block=(512,1,1) lds={LDS_BYTES}\n"
if k2: txt += f"; @launch kernel={k2} grid=(640,1,1) block=(256,1,1) lds=0\n"
txt += '.amdgcn_target "amdgcn-amd-amdhsa--gfx950"\n.text\n'
txt += "\n".join(L) + "\n"
txt += '.section .rodata,"a"\n.p2align 6\n' + desc(k1, 256, 100) + ("\n.p2align 6\n" + desc(k2, 80, 32) if k2 else "") + "\n"
open(OUT, "w").write(txt)
print("wrote", OUT, len(txt), "bytes", len(L), "lines")
```

```python
import sys
NAME = "concat_heads__gqa_block_cached__gqa_block_cached__near_ridge"
OUT = sys.argv[1] if len(sys.argv) > 1 else f"cdna_kernels/{NAME}.s"
OPT = dict(a.split("=") for a in sys.argv[2:])
DEBUG = int(OPT.get("debug", 0))
ST_FLAGS = OPT.get("st", "").replace("+", " ")
KV_FLAGS = OPT.get("kv", "").replace("+", " ")
RD_FLAGS = OPT.get("rd", "").replace("+", " ")
WARM = int(OPT.get("warm", 1))
PRIO = int(OPT.get("prio", 0))
KVPF = int(OPT.get("kvpf", 0))
PFSH = int(OPT.get("pfsh", 2))
PFO = int(OPT.get("pfo", 36864))
PF_FLAGS = OPT.get("pff", "").replace("+", " ")
PFS = int(OPT.get("pfs", 0))
sPF = 4; sPFO = 3; vPFK = 11; vPFW = 19
FUSE = int(OPT.get("fuse", 1))
if FUSE and "sc1" not in ST_FLAGS: ST_FLAGS = "sc1"
PROF = int(OPT.get("prof", 0))
NODMA = int(OPT.get("nodma", 0)); NOMFMA = int(OPT.get("nomfma", 0))
nstamp = [0]
def stamp():
    if not PROF: return
    e("s_waitcnt lgkmcnt(0)")
    e("s_memrealtime s[96:97]")
    e("s_memtime s[98:99]")
    e("s_waitcnt lgkmcnt(0)")
    e(f"s_mov_b32 s{80+nstamp[0]}, s96")
    e(f"s_mov_b32 s{88+nstamp[0]}, s98")
    nstamp[0] += 1
def stamp_out():
    if not PROF: return
    e("s_waitcnt vmcnt(0)")
    stamp()
    for i in range(16): e(f"v_writelane_b32 v2, s{80+i}, {i}")
    e(f"s_lshl_b32 s{sTMP}, s2, 3"); e(f"s_add_u32 s{sTMP}, s{sTMP}, s{sW}")
    e(f"s_lshl_b32 s{sTMP}, s{sTMP}, 6")
    e(f"s_add_u32 s{sTMP}, s{sTMP}, 0x8000000")
    srd(sWS, sPTR+24, sTMP, 64)
    e(f"v_lshlrev_b32 v3, 2, v{vLANE}")
    e(f"buffer_store_dword v2, v3, {sr(sWS)}, 0 offen")
L = []
RARE = []
hr = [0]
def e(s):
    if NODMA and s.startswith("buffer_load") and " lds" in s and (NODMA == 1 or nstamp[0] >= 2): return
    if int(OPT.get("halfrd", 0)) and s.startswith("ds_read") and nstamp[0] >= 2:
        hr[0] += 1
        if hr[0] & 2: return
    if NOMFMA and (s.startswith("v_mfma") or s.startswith("ds_read") or s.startswith("v_exp") or s.startswith("v_fma") or s.startswith("v_max3")): return
    L.append(s if s.endswith(":") else "    " + s)
def lab(s): L.append(s + ":")
def cm(s): L.append("    ; " + s)

SLOT = 24576; NSLOT = 5; XA = SLOT * NSLOT
LDS_BYTES = XA + 32768
LA = 5

ACC = 160; QF = 112; SS = (80, 96); P = 72; AF = 48
vLANE, vHF, vT0, vT1, vT2, vT3 = 1, 2, 3, 4, 5, 6
vKREL, vVREL, vOREL = 8, 9, 10
vA = 12; vD = 16; vW = 20; vO = 24; vXO = 28; vXA = 32
vM, vMT, vL0, vL1, vMX, vMX2, vAL = 36, 37, 38, 39, 40, 41, 42
vST = 43; vEX = 44; vEXR = 45; vPF = 46; vPFA = 47
sK, sV, sWQ, sWO, sX, sWS = 8, 12, 16, 20, 24, 28
sCUR, sPREV, sWOFS, sW, sHALF, sQG = 32, 33, 34, 35, 36, 37
sCNT, sSOFF, sSOFF2, sXOFF, sC, sTMP, sTMP2, sXM0 = 38, 39, 40, 41, 42, 43, 44, 45
sSTO = 46; sSTO2 = 47
sPTR = 48
sBLK, sB, sHP, sH = 76, 77, 78, 79
sVOFF, sRS = 74, 75
OA = QF; OP = QF + 32; F = ACC
XS = (112, 80); vXB = 72; vWREL = 76; vQW = 77; vQR = 78; QXB = 106496

def vr(b, n): return f"v[{b}:{b+n-1}]"
def sr(b, n=4): return f"s[{b}:{b+n-1}]"

class VM:
    def __init__(s): s.ops = []
    def issue(s, tag, n=1): s.ops += [tag] * n
    def need(s, tags):
        for t in tags: assert t in s.ops, t
        last = max(i for i, t in enumerate(s.ops) if t in tags)
        return len(s.ops) - 1 - last
vm = VM()

def rotate_ops():
    return [f"s_mov_b32 s{sPREV}, s{sCUR}", f"s_add_u32 s{sCUR}, s{sCUR}, {SLOT}",
            f"s_cmp_eq_u32 s{sCUR}, {SLOT*NSLOT}", f"s_cselect_b32 s{sCUR}, 0, s{sCUR}"]

def dma3(srd, v0, soff, flags=""):
    return [f"buffer_load_dwordx4 v{v0+j}, {sr(srd)}, s{soff} offen offset:{1024*j} {flags} lds" for j in range(3)]

def load_ops(kind):
    if kind is None: return []
    ops = [f"s_add_u32 m0, s{sPREV}, s{sWOFS}", "s_nop 0"]
    if kind == "W":
        ops += dma3(sWQ, vW, sSOFF) + [f"s_add_u32 s{sSOFF}, s{sSOFF}, {32*12288}"]
    elif kind == "K":
        ops += dma3(sK, vD, sSOFF2, KV_FLAGS) + [f"s_add_u32 s{sSOFF2}, s{sSOFF2}, 12288\n    s_cmp_eq_u32 s{sSOFF2}, 196608\n    s_cselect_b32 s{sSOFF2}, 0, s{sSOFF2}"]
    elif kind == "V":
        ops += dma3(sV, vD, sVOFF, KV_FLAGS) + [f"s_add_u32 s{sVOFF}, s{sVOFF}, 12288\n    s_cmp_eq_u32 s{sVOFF}, 196608\n    s_cselect_b32 s{sVOFF}, 0, s{sVOFF}"]
    elif kind[0] == "O":
        rho = int(kind[1])
        ops += dma3(sWO, vO, sSOFF)
        ops += [f"s_add_u32 s{sSOFF}, s{sSOFF}, {96*1280}"] if rho < 3 else [f"s_sub_u32 s{sSOFF}, s{sSOFF}, {3*96*1280-256}"]
    return ops

def x_ops(xslot):
    return [f"s_add_u32 m0, s{sXM0}, {xslot*16384}", "s_nop 0",
            f"buffer_load_dwordx4 v{vXO}, {sr(sX)}, s{sXOFF} offen lds",
            f"buffer_load_dwordx4 v{vXO+1}, {sr(sX)}, s{sXOFF} offen offset:1024 lds",
            f"s_add_u32 s{sXOFF}, s{sXOFF}, 128"]
def x_reads(k):
    return [f"ds_read_b128 {vr(XS[k&1]+16*u+4*s_,4)}, v{(vXB, vXA)[u]+s_} offset:{(k&1)*16384}" for s_ in range(4) for u in range(2)]

def addr_ops(kind):
    if kind == "W": return [f"v_add_u32 v{vA}, s{sCUR}, v{vWREL}", f"v_xor_b32 v{vA+1}, 16, v{vA}"]
    if kind in ("W", "V"):
        return [f"v_add_u32 v{vA}, s{sCUR}, v{vVREL}", f"v_xor_b32 v{vA+1}, 16, v{vA}",
                f"v_xor_b32 v{vA+2}, 64, v{vA}", f"v_xor_b32 v{vA+3}, 0x50, v{vA}"]
    if kind == "K":
        return [f"v_add_u32 v{vA}, s{sCUR}, v{vKREL}"] + [f"v_xor_b32 v{vA+m}, {32*m}, v{vA}" for m in range(1, 4)]
    return [f"v_add_u32 v{vA}, s{sCUR}, v{vOREL}", f"v_xor_b32 v{vA+1}, 64, v{vA}"]

def frag_reads(kind, m):
    d = AF + 4 * (m % 6)
    if kind == "W":
        if m >= 6: return []
        v, t = divmod(m, 3)
        return [f"ds_read_b64_tr_b16 {vr(d+2*q,2)}, v{vA+q} offset:{128*t + 6144*v + 1536*q}" for q in range(2)]
    if kind == "V":
        v, t = divmod(m, 6)
        return [f"ds_read_b64_tr_b16 {vr(d+2*q,2)}, v{vA + q + 2*(t&1)} offset:{128*(t>>1) + 6144*v + 1536*q}" for q in range(2)]
    if kind == "K":
        return [f"ds_read_b128 {vr(d,4)}, v{vA+(m&3)} offset:{128*(m>>2)}"]
    tn, ee = divmod(m, 6)
    return [f"ds_read_b64_tr_b16 {vr(d+2*q,2)}, v{vA+tn} offset:{4096*ee+1024*q}" for q in range(2)]

def mfma(kind, m, par):
    d = vr(AF + 4 * (m % 6), 4)
    if int(OPT.get("m16", 0)):
        def mm(a, b, z=False): return f"v_mfma_f32_16x16x32_bf16 {vr(a,4)}, {d}, {vr(b,4)}, {'0' if z else vr(a,4)}"
        if kind == "W": b = SS[par[0]] + 8 * par[1]; return mm(ACC+8*m, b) + "\n    " + mm(ACC+8*m+4, b+4)
        if kind == "V": return mm(ACC+8*m, par) + "\n    " + mm(ACC+8*m+4, par+4)
        if kind == "K": a = SS[par] + 8 * (m & 1); return mm(a, QF+8*(m>>1), m < 2) + "\n    " + mm(a+4, QF+8*(m>>1)+4, m < 2)
        a = OA + 8 * (m // 3); b = F + 24 * par + 8 * (m % 3); z = par == 0 and m % 3 == 0
        return mm(a, b, z) + "\n    " + mm(a+4, b+4, z)
    if kind == "W":
        v, t = divmod(m, 6); a = vr(ACC + 16 * t, 16); d = vr(AF + 4 * (3 * v + m % 3), 4)
        return f"v_mfma_f32_32x32x16_bf16 {a}, {d}, {vr(XS[par[0]]+16*(t//3)+4*(2*par[1]+v),4)}, {a}"
    if kind == "V":
        v, t = divmod(m, 6); a = vr(ACC + 16 * t, 16)
        return f"v_mfma_f32_32x32x16_bf16 {a}, {d}, {vr(par+4*v,4)}, {a}"
    if kind == "K":
        a = vr(SS[par], 16)
        return f"v_mfma_f32_32x32x16_bf16 {a}, {d}, {vr(QF+4*m,4)}, {'0' if m == 0 else a}"
    tn, ee = divmod(m, 6); a = vr(OA + 16 * tn, 16)
    return f"v_mfma_f32_32x32x16_bf16 {a}, {d}, {vr(F+4*(6*par+ee),4)}, {'0' if (par == 0 and ee == 0) else a}"

def spread(items, lo, hi):
    n = hi - lo + 1; d = {}
    for i, x in enumerate(items): d.setdefault(lo + i * n // max(len(items), 1), []).append(x)
    return d

def step(kind, par, nxt, n, mem, valu=None, xrd=None, pre=None):
    k0 = kind[0]; nk = nxt[0] if nxt else None
    per = 1 if k0 == "K" else 2
    q = [f"f{m}" for m in range(6) for _ in range(per)]
    valu = valu or {}
    for x in (pre or []): e(x)
    mem = list(mem)
    for m in range(12):
        tag = f"f{m}" if k0 != "W" else f"f{3*(m//6)+m%3}"
        if tag in q:
            last = max(i for i, t in enumerate(q) if t == tag)
            e(f"s_waitcnt lgkmcnt({min(15, len(q)-1-last)})")
            q = q[last + 1:]
        e(mfma(k0, m, par))
        if m < 6:
            for r in frag_reads(k0, m + 6): e(r); q.append(f"f{m+6}")
        if m == 6:
            for x in rotate_ops(): e(x)
        if m == 7 and nk:
            for x in addr_ops(nk): e(x)
        for x in valu.get(m, []): e(x)
        if m == 8:
            e(f"s_waitcnt vmcnt({n}) lgkmcnt(0)"); e("s_barrier"); q = []
            for x in (xrd or []): e(x)
            if nk:
                for mm in range(3):
                    for r in frag_reads(nk, mm): e(r)
        if m >= 9 and xrd: e("s_waitcnt lgkmcnt(12)")
        if m >= 9 and nk:
            for r in frag_reads(nk, m - 6): e(r)
        if m >= 8:
            nb = (sum(x.startswith("buffer") for x in mem) + (11 - m)) // (12 - m) if m > 8 else 0
            while mem and (m == 11 or nb > 0 or not mem[0].startswith("buffer")):
                x = mem.pop(0); e(x)
                if x.startswith("buffer"): nb -= 1

rid = [0]
def softA(S, setflag=True, nexp=8):
    rid[0] += 1; r = rid[0]
    o = [f"v_max3_f32 v{vMX}, v{S}, v{S+1}, v{S+2}"]
    o += [f"v_max3_f32 v{vMX}, v{vMX}, v{S+3+2*k}, v{S+4+2*k}" for k in range(6)]
    o += [f"v_max_f32 v{vMX}, v{vMX}, v{S+15}", f"v_mov_b32 v{vMX2}, v{vMX}\n    s_nop 1\n    v_permlane32_swap_b32 v{vMX}, v{vMX2}\n    s_nop 1",
          f"v_max_f32 v{vMX}, v{vMX}, v{vMX2}", f"v_mul_f32 v{vMX}, s{sC}, v{vMX}",
          f"v_cmp_gt_f32 vcc, v{vMX}, v{vMT}\n    s_cbranch_vccnz L_ra{r}\nL_rb{r}:\n    s_nop 0"]
    RARE.extend([f"L_ra{r}:", f"v_max_f32 v{vMX}, v{vMX}, v{vM}", f"v_sub_f32 v{vAL}, v{vM}, v{vMX}", f"v_exp_f32 v{vAL}, v{vAL}",
                 f"v_mov_b32 v{vM}, v{vMX}", f"v_add_f32 v{vMT}, s{sTMP2}, v{vMX}", f"v_mul_f32 v{vL0}, v{vL0}, v{vAL}",
                 f"v_mul_f32 v{vL1}, v{vL1}, v{vAL}"] + ([f"s_mov_b32 s{sRS}, 1"] if setflag else []) + [f"s_branch L_rb{r}"])
    o += [f"v_fma_f32 v{S+k}, v{S+k}, s{sC}, -v{vM}" for k in range(16)]
    o += [f"v_exp_f32 v{S+k}, v{S+k}" for k in range(nexp)]
    return o
def softB(S, Pd, nexp=8):
    o = [f"v_exp_f32 v{S+k}, v{S+k}" for k in range(nexp, 16)]
    for k in range(8):
        o += [f"v_cvt_pk_bf16_f32 v{Pd+k}, v{S+2*k}, v{S+2*k+1}"]
        if k < 6: o += [f"v_add_f32 v{vL0}, v{vL0}, v{S+2*k}", f"v_add_f32 v{vL1}, v{vL1}, v{S+2*k+1}"]
    for k in (6, 7): o += [f"v_add_f32 v{vL0}, v{vL0}, v{S+2*k}", f"v_add_f32 v{vL1}, v{vL1}, v{S+2*k+1}"]
    return o
def rescale_chk():
    rid[0] += 1; r = rid[0]
    RARE.extend([f"L_ra{r}:", "s_nop 15"] + [f"v_mul_f32 v{ACC+k}, v{ACC+k}, v{vAL}" for k in range(96)]
                + [f"s_mov_b32 s{sRS}, 0", "s_nop 1", f"s_branch L_rb{r}"])
    return f"s_cmp_lg_u32 s{sRS}, 0\n    s_cbranch_scc1 L_ra{r}\nL_rb{r}:\n    s_nop 0"
def merge(*ds):
    o = {}
    for d in ds:
        for k, v in d.items(): o.setdefault(k, []).extend(v)
    return o

def srd(d, ptr, off_s, nbytes):
    e(f"s_add_u32 s{d}, s{ptr}, s{off_s}")
    e(f"s_addc_u32 s{d+1}, s{ptr+1}, 0")
    e(f"s_and_b32 s{d+1}, s{d+1}, 0xffff")
    e(f"s_mov_b32 s{d+2}, {nbytes}" if isinstance(nbytes, int) else f"s_mov_b32 s{d+2}, s{nbytes[0]}")
    e(f"s_mov_b32 s{d+3}, 0x20000")

def swz(dst, r, tmp):
    e(f"v_bfe_u32 v{dst}, v{r}, 2, 2")
    e(f"v_bfe_u32 v{tmp}, v{r}, 1, 1")
    e(f"v_lshl_or_b32 v{dst}, v{tmp}, 2, v{dst}")

def kernel1():
    K1 = "attn_kernel"
    L.append(f".globl {K1}\n.p2align 8\n.type {K1},@function\n{K1}:")
    e(f"s_cmp_ge_u32 s2, {0 if int(OPT.get('empty',0))&1 else 256}")
    e("s_cbranch_scc1 L_end")
    if OPT.get("halfwg"):
        e(f"s_and_b32 s3, s2, {OPT['halfwg']}"); e("s_cbranch_scc1 L_end")
    e(f"s_load_dwordx16 s[{sPTR}:{sPTR+15}], s[0:1], 0")
    e(f"s_load_dwordx8 s[{sPTR+16}:{sPTR+23}], s[0:1], 64")
    e(f"s_load_dwordx2 s[{sPTR+24}:{sPTR+25}], s[0:1], 96")
    stamp()
    e(f"v_lshrrev_b32 v{vT0}, 6, v0")
    e(f"v_and_b32 v{vLANE}, 63, v0")
    e(f"v_readfirstlane_b32 s{sW}, v{vT0}")
    e(f"v_lshrrev_b32 v{vHF}, 5, v{vLANE}")
    e(f"s_bfe_u32 s{sBLK}, s2, 0x10002")
    e(f"s_bfe_u32 s{sB}, s2, 0x30005")
    e(f"s_and_b32 s{sHP}, s2, 3")
    e(f"s_lshl_b32 s{sHP}, s{sHP}, 2")
    e(f"s_bfe_u32 s{sTMP}, s2, 0x20003")
    e(f"s_add_u32 s{sHP}, s{sHP}, s{sTMP}")
    e(f"s_lshr_b32 s{sHALF}, s{sW}, 2")
    e(f"s_and_b32 s{sQG}, s{sW}, 3")
    e(f"s_lshl_b32 s{sH}, s{sHP}, 1")
    e(f"s_add_u32 s{sH}, s{sH}, s{sHALF}")
    e(f"s_mul_i32 s{sWOFS}, s{sW}, 3072")
    e(f"s_lshl_b32 s{sXM0}, s{sW}, 11")
    e(f"s_add_u32 s{sXM0}, s{sXM0}, {XA}")
    e(f"s_mov_b32 s{sC}, 0x{f32hex(192**-0.5 * 1.4426950408889634)}")
    e(f"s_mov_b32 s{sTMP2}, 0x41000000")
    e(f"s_mul_i32 s{sTMP}, s{sQG}, 24")
    for j in range(3):
        e(f"v_lshrrev_b32 v{vT0}, 3, v{vLANE}")
        e(f"v_add_u32 v{vT0}, s{sTMP}, v{vT0}")
        if j: e(f"v_add_u32 v{vT0}, {8*j}, v{vT0}")
        e(f"v_mul_u32_u24 v{vT1}, 43, v{vT0}")
        e(f"v_lshrrev_b32 v{vT1}, 7, v{vT1}")
        swz(vT2, vT1, vT3)
        e(f"v_and_b32 v{vT3}, 7, v{vLANE}")
        e(f"v_xor_b32 v{vT2}, v{vT2}, v{vT3}")
        e(f"v_lshlrev_b32 v{vT2}, 4, v{vT2}")
        e(f"v_lshl_add_u32 v{vD+j}, v{vT0}, 7, v{vT2}")
        if j: e(f"v_subrev_u32 v{vD+j}, {1024*j}, v{vD+j}")
        e(f"v_mul_u32_u24 v{vT1}, {12288-384}, v{vT1}")
        e(f"v_add_u32 v{vW+j}, v{vD+j}, v{vT1}")
    e(f"v_lshrrev_b32 v{vT0}, 4, v{vLANE}")
    e(f"v_lshlrev_b32 v{vT1}, 2, v{vT0}")
    e(f"v_and_b32 v{vT2}, 15, v{vLANE}")
    e(f"v_xor_b32 v{vT1}, v{vT1}, v{vT2}")
    e(f"v_lshlrev_b32 v{vT1}, 4, v{vT1}")
    e(f"s_mul_i32 s{sTMP}, s{sW}, 12")
    e(f"v_add_u32 v{vT0}, s{sTMP}, v{vT0}")
    e(f"v_mul_u32_u24 v{vT0}, 1280, v{vT0}")
    e(f"v_add_u32 v{vO}, v{vT0}, v{vT1}")
    e(f"v_add_u32 v{vO+1}, {4*1280-1024}, v{vO}")
    e(f"v_add_u32 v{vO+2}, {2*(4*1280-1024)}, v{vO}")
    for pj in range(2):
        e(f"v_lshrrev_b32 v{vT0}, 4, v{vLANE}")
        if pj: e(f"v_add_u32 v{vT0}, 4, v{vT0}")
        e(f"v_and_b32 v{vT1}, 7, v{vLANE}")
        e(f"v_xor_b32 v{vT1}, v{vT1}, v{vT0}")
        e(f"v_lshlrev_b32 v{vT1}, 4, v{vT1}")
        e(f"s_lshl_b32 s{sTMP}, s{sW}, 4")
        e(f"v_lshrrev_b32 v{vT0}, 3, v{vLANE}")
        e(f"v_add_u32 v{vT0}, s{sTMP}, v{vT0}")
        e(f"v_mul_u32_u24 v{vT0}, 1280, v{vT0}")
        e(f"v_add_u32 v{vXO+pj}, v{vT0}, v{vT1}")
        if pj: e(f"v_add_u32 v{vXO+pj}, {8*1280-1024}, v{vXO+pj}")
    e("s_waitcnt lgkmcnt(0)")
    e(f"s_cmp_eq_u32 s{sBLK}, 0")
    for k in range(5):
        e(f"s_cselect_b64 s[{sPTR+2*k}:{sPTR+2*k+1}], s[{sPTR+2*k}:{sPTR+2*k+1}], s[{sPTR+10+2*k}:{sPTR+11+2*k}]")
    e(f"s_mul_i32 s{sTMP}, s{sB}, 163840"); srd(sX, sPTR, sTMP, 163840)
    e(f"s_mul_i32 s{sTMP}, s{sH}, 384")
    e(f"s_sub_u32 s{sCNT}, {640*12288}, s{sTMP}"); srd(sWQ, sPTR+6, sTMP, (sCNT,))
    e(f"s_mov_b32 s{sSOFF}, 0"); e(f"s_mov_b32 s{sXOFF}, 0"); e(f"s_mov_b32 s{sSOFF2}, 0"); e(f"s_mov_b32 s{sVOFF}, 0"); e(f"s_mov_b32 s{sRS}, 0")
    for i in range(LA):
        e(f"s_mov_b32 s{sPREV}, {SLOT*i}")
        if i < 2:
            for x in x_ops(i): e(x)
            vm.issue(f"x{i}", 2)
        for x in load_ops("W"): e(x)
        vm.issue(f"t{i}", 3)
    if WARM:
        e(f"v_mul_u32_u24 v{vT0}, 171, v0"); e(f"v_lshrrev_b32 v{vT0}, 10, v{vT0}")
        e(f"v_mul_u32_u24 v{vT1}, {12288-768}, v{vT0}")
        e(f"v_lshlrev_b32 v{vPFA}, 7, v0")
        e(f"v_add_u32 v{vPFW}, v{vT1}, v{vPFA}")
        e(f"s_mul_i32 s{sTMP}, s{sHP}, 768"); e(f"s_mul_i32 s{sCNT}, s{sB}, {20*12288}"); e(f"s_add_u32 s{sTMP}, s{sTMP}, s{sCNT}")
        e(f"s_add_u32 s{sTMP}, s{sTMP}, {160*12288}")
        srd(sWO, sPTR+6, sTMP, 19*12288+768)
        e(f"buffer_load_dword v{vPF}, v{vPFW}, {sr(sWO)}, 0 offen")
        e(f"s_add_u32 s{sTMP}, s{sTMP}, s{sCNT}"); e(f"s_add_u32 s{sTMP}, s{sTMP}, {160*12288}")
        srd(sPF, sPTR+6, sTMP, 39*12288+768)
        vm.issue("pf", 1)
    e(f"s_mov_b32 s{sCUR}, 0")
    ROT = int(OPT.get("rot", 1))
    if ROT:
        if ROT == 1:
            e(f"s_lshl_b32 s{sTMP}, s{sB}, 1"); e(f"s_add_u32 s{sTMP}, s{sTMP}, s{sH}"); e(f"s_add_u32 s{sTMP}, s{sTMP}, s{sBLK}")
        elif ROT == 2:
            e(f"s_mul_i32 s{sTMP}, s{sB}, 3"); e(f"s_mul_i32 s{sCNT}, s{sH}, 5"); e(f"s_add_u32 s{sTMP}, s{sTMP}, s{sCNT}")
            e(f"s_lshl_b32 s{sCNT}, s{sBLK}, 3"); e(f"s_add_u32 s{sTMP}, s{sTMP}, s{sCNT}")
        elif ROT == 3:
            e(f"s_lshl_b32 s{sTMP}, s{sB}, 1"); e(f"s_add_u32 s{sTMP}, s{sTMP}, s{sHP}")
        e(f"s_and_b32 s{sTMP}, s{sTMP}, 15"); e(f"s_mul_i32 s{sSOFF2}, s{sTMP}, 12288"); e(f"s_mov_b32 s{sVOFF}, s{sSOFF2}")
    e(f"s_lshl_b32 s{sTMP}, s{sB}, 5")
    e(f"s_add_u32 s{sTMP}, s{sTMP}, s{sH}")
    e(f"s_mul_i32 s{sTMP}, s{sTMP}, 196608")
    srd(sK, sPTR+2, sTMP, 196608); srd(sV, sPTR+4, sTMP, 196608)
    e(f"s_mul_i32 s{sTMP}, s{sHP}, 491520"); srd(sWO, sPTR+8, sTMP, 491520)
    e(f"s_lshl_b32 s{sTMP}, s{sBLK}, 3"); e(f"s_add_u32 s{sTMP}, s{sTMP}, s{sB}")
    e(f"s_lshl_b32 s{sTMP}, s{sTMP}, 4"); e(f"s_add_u32 s{sTMP}, s{sTMP}, s{sHP}")
    e(f"s_mul_i32 s{sTMP}, s{sTMP}, 163840")
    e(f"s_mul_i32 s{sCNT}, s{sQG}, 40960"); e(f"s_add_u32 s{sTMP}, s{sTMP}, s{sCNT}")
    srd(sWS, sPTR+24, sTMP, 40960)
    e(f"s_lshl_b32 s{sSTO}, s{sHALF}, 12")
    e(f"v_lshlrev_b32 v{vST}, 4, v{vLANE}")
    e(f"s_mul_i32 s{sTMP}, s{sHALF}, 12288")
    e(f"v_and_b32 v{vT0}, 0x13, v{vLANE}")
    e(f"v_bfe_u32 v{vT1}, v{vLANE}, 2, 1"); e(f"v_lshl_or_b32 v{vT0}, v{vT1}, 3, v{vT0}")
    e(f"v_bfe_u32 v{vT1}, v{vLANE}, 3, 1"); e(f"v_lshl_or_b32 v{vT0}, v{vT1}, 2, v{vT0}")
    swz(vT1, vT0, vT2)
    e(f"v_xor_b32 v{vT1}, v{vT1}, v{vHF}")
    e(f"v_lshlrev_b32 v{vT1}, 4, v{vT1}")
    e(f"v_mul_u32_u24 v{vT0}, 384, v{vT0}")
    e(f"v_add3_u32 v{vKREL}, v{vT0}, v{vT1}, s{sTMP}")
    e(f"s_and_b32 s{sCNT}, s{sQG}, 1"); e(f"s_lshl_b32 s{sCNT}, s{sCNT}, 6")
    e(f"v_xor_b32 v{vKREL}, s{sCNT}, v{vKREL}")
    e(f"v_bfe_u32 v{vT0}, v{vLANE}, 2, 2")
    e(f"v_lshl_add_u32 v{vT0}, v{vHF}, 3, v{vT0}")
    e(f"v_mul_u32_u24 v{vT0}, 384, v{vT0}")
    e(f"v_bfe_u32 v{vT1}, v{vLANE}, 3, 1"); e(f"v_lshl_add_u32 v{vT0}, v{vT1}, 6, v{vT0}")
    e(f"v_bfe_u32 v{vT1}, v{vLANE}, 4, 1"); e(f"v_xor_b32 v{vT1}, v{vT1}, v{vHF}"); e(f"v_lshl_add_u32 v{vT0}, v{vT1}, 5, v{vT0}")
    e(f"v_and_b32 v{vT1}, 1, v{vLANE}"); e(f"v_lshl_add_u32 v{vT0}, v{vT1}, 4, v{vT0}")
    e(f"v_bfe_u32 v{vT1}, v{vLANE}, 1, 1"); e(f"v_lshl_add_u32 v{vT0}, v{vT1}, 3, v{vT0}")
    e(f"v_add_u32 v{vVREL}, s{sTMP}, v{vT0}")
    e(f"v_xor_b32 v{vWREL}, s{sCNT}, v{vVREL}")
    e(f"v_bfe_u32 v{vT0}, v{vLANE}, 2, 2")
    e(f"v_lshlrev_b32 v{vT2}, 2, v{vT0}")
    e(f"v_lshl_add_u32 v{vT0}, v{vHF}, 3, v{vT0}")
    e(f"v_lshlrev_b32 v{vT0}, 8, v{vT0}")
    e(f"v_bfe_u32 v{vT1}, v{vLANE}, 4, 1"); e(f"v_lshlrev_b32 v{vT1}, 1, v{vT1}")
    e(f"v_and_b32 v{vT3}, 1, v{vLANE}"); e(f"v_or_b32 v{vT1}, v{vT1}, v{vT3}")
    e(f"s_lshl_b32 s{sTMP}, s{sHALF}, 3")
    e(f"v_or_b32 v{vT1}, s{sTMP}, v{vT1}")
    e(f"v_xor_b32 v{vT1}, v{vT1}, v{vT2}")
    e(f"v_lshl_add_u32 v{vT0}, v{vT1}, 4, v{vT0}")
    e(f"v_bfe_u32 v{vT1}, v{vLANE}, 1, 1"); e(f"v_lshl_add_u32 v{vOREL}, v{vT1}, 3, v{vT0}")
    e(f"v_and_b32 v{vT0}, 31, v{vLANE}")
    e(f"v_bfe_u32 v{vT1}, v{vLANE}, 1, 3")
    e(f"v_xor_b32 v{vT1}, v{vT1}, v{vHF}")
    e(f"v_lshlrev_b32 v{vT1}, 4, v{vT1}")
    e(f"v_lshl_add_u32 v{vT0}, v{vT0}, 7, v{vT1}")
    e(f"s_lshl_b32 s{sTMP}, s{sQG}, 12"); e(f"s_add_u32 s{sTMP}, s{sTMP}, {XA}")
    e(f"v_add_u32 v{vXA}, s{sTMP}, v{vT0}")
    for m in range(1, 4): e(f"v_xor_b32 v{vXA+m}, {32*m}, v{vXA}")
    for m in range(4): e(f"v_xor_b32 v{vXB+m}, 0x1000, v{vXA+m}")
    e(f"s_mul_i32 s{sCNT}, s{sW}, 6144"); e(f"s_add_u32 s{sCNT}, s{sCNT}, {QXB}"); e(f"v_add_u32 v{vQW}, s{sCNT}, v{vST}")
    e(f"s_xor_b32 s{sCNT}, s{sW}, 1"); e(f"s_mul_i32 s{sCNT}, s{sCNT}, 6144"); e(f"s_add_u32 s{sCNT}, s{sCNT}, {QXB}"); e(f"v_add_u32 v{vQR}, s{sCNT}, v{vST}")
    e(f"v_add_u32 v{vEXR}, s{sTMP}, v{vST}")
    e(f"s_lshl_b32 s{sTMP}, s{sW}, 12"); e(f"s_add_u32 s{sTMP}, s{sTMP}, {XA}")
    e(f"v_add_u32 v{vEX}, s{sTMP}, v{vST}")
    for r in range(96): e(f"v_mov_b32 v{ACC+r}, 0")
    e(f"v_mov_b32 v{vM}, 0xf149f2ca"); e(f"v_mov_b32 v{vMT}, 0xf149f2ca")
    e(f"v_mov_b32 v{vL0}, 0"); e(f"v_mov_b32 v{vL1}, 0")


    kinds = ["W"] * 20 + ["K", "K"] + ["V", "K"] * 14 + ["V", "V"] + ["O0", "O1", "O2", "O3"] * 5
    NT = len(kinds); assert NT == 72
    WOPF = 46
    first = vm.need(["t0", "x0"])
    if WARM: vm.issue("pf", 2)
    waits = []
    for i in range(NT):
        if kinds[i] == "O0": vm.issue("st", 2)
        need = ([f"t{i+1}"] if i + 1 < NT + 1 else []) + ([f"x{(i+1)//2}"] if i < 18 and i % 2 == 1 else [])
        waits.append(vm.need(need) - (int(OPT.get("tight", 0)) if 20 <= i < 46 else 0))
        if i < 16 and i % 2 == 0: vm.issue(f"x{i//2+2}", 2)
        if i == 20: vm.issue("t24", 3)
        if i != 19: vm.issue(f"t{i+LA}", 3)
        if i == WOPF and WARM: vm.issue("pf", 1)
        if KVPF and i < max(12, KVPF): vm.issue("pf", 1)
        if kinds[i] == "O3": vm.issue("st", 2)
    kx = kinds + ["O0", "O1", "O2", "O3", "O0", "O1"]
    def same(idx, stride, cnt): return min(waits[idx + stride * k] for k in range(cnt))
    def qstep(i, n):
        k = i // 2
        mem = (x_ops(k & 1) if (i < 16 and i % 2 == 0) else []) + (load_ops(kx[i + LA]) if i != 19 else [])
        if KVPF and i < max(12, KVPF):
            mem += [f"buffer_load_dword v7, v{vPFK}, {sr(sPF)}, s{sPFO} offen {PF_FLAGS}",
                    f"s_cmp_lg_u32 s{sPF+2}, 0\n    s_cselect_b32 s{sTMP}, {16384 >> PFSH}, 0\n    s_add_u32 s{sPFO}, s{sPFO}, s{sTMP}\n    s_cmp_eq_u32 s{sPFO}, 196608\n    s_cselect_b32 s{sPFO}, 0, s{sPFO}"]
            if i == 3 and PFS: mem += [f"s_cmp_eq_u32 s{sCNT}, {4-PFS}\n    s_cselect_b32 s{sPF+2}, 196608, s{sPF+2}"]
        valu = {}
        if i == 19:
            for t in range(3): valu[9 + t] = [f"v_cvt_pk_bf16_f32 v{QF+16*t+8+j}, v{ACC+16*t+2*j}, v{ACC+16*t+2*j+1}" for j in range(8)]
        step("W", (k & 1, i & 1), kx[i + 1], n, mem, valu, x_reads(k + 1) if (i < 18 and i % 2 == 1) else None)
    cm("Q phase")
    if PRIO:
        e(f"s_cmp_eq_u32 s{sHALF}, 0"); e("s_cbranch_scc1 L_np"); e("s_setprio 1"); lab("L_np")
    for x in addr_ops("W"): e(x)
    e(f"s_waitcnt vmcnt({first})"); e("s_barrier")
    stamp()
    for x in x_reads(0): e(x)
    if WARM:
        e(f"s_bfe_u32 s{sTMP}, s2, 0x20003"); e(f"s_mul_i32 s{sTMP}, s{sTMP}, 40960")
        e(f"buffer_load_dword v7, v{vPFA}, {sr(sX)}, s{sTMP} offen")
        e(f"buffer_load_dword v{vPF}, v{vPFW}, {sr(sPF)}, 0 offen")
    if KVPF:
        e(f"s_and_b32 s{sTMP}, s{sQG}, 1"); e(f"s_cmp_eq_u32 s{sTMP}, 0")
        e(f"s_cselect_b32 s{sPF}, s{sK}, s{sV}"); e(f"s_cselect_b32 s{sPF+1}, s{sK+1}, s{sV+1}")
        e(f"s_mov_b32 s{sPF+2}, {196608 if PFS == 0 else 0}"); e(f"s_mov_b32 s{sPF+3}, 0x20000")
        e(f"s_lshr_b32 s{sTMP}, s{sQG}, 1"); e(f"s_lshl_b32 s{sTMP}, s{sTMP}, {13-PFSH}")
        e(f"s_add_u32 s{sPFO}, s{sVOFF}, {PFO}"); e(f"s_sub_u32 s{sCNT}, s{sPFO}, 196608"); e(f"s_cmp_ge_u32 s{sPFO}, 196608"); e(f"s_cselect_b32 s{sPFO}, s{sCNT}, s{sPFO}")
        e(f"v_lshrrev_b32 v{vPFK}, {PFSH}, v{vLANE}"); e(f"v_lshlrev_b32 v{vPFK}, 7, v{vPFK}"); e(f"v_add_u32 v{vPFK}, s{sTMP}, v{vPFK}")
    e("s_waitcnt lgkmcnt(2)")
    for m in range(6):
        for r in frag_reads("W", m): e(r)
    e(f"s_mov_b32 s{sCNT}, 3")
    lab("L_q")
    for k in range(4): qstep(k, same(k, 4, 3))
    e(f"s_sub_u32 s{sCNT}, s{sCNT}, 1"); e(f"s_cmp_lg_u32 s{sCNT}, 0"); e("s_cbranch_scc1 L_q")
    for i in range(12, 20): qstep(i, waits[i])
    e(f"s_mov_b32 s{sSOFF}, 0")
    cm("attention phase")
    if PROF: stamp()
    for f in range(6): e(f"ds_write_b128 v{vQW}, {vr(QF+16*(f//2)+8+4*(f&1),4)} offset:{1024*f}")
    for t in range(2):
        for j in range(8): e(f"v_cvt_pk_bf16_f32 v{QF+16*t+j}, v{ACC+48+16*t+2*j}, v{ACC+48+16*t+2*j+1}")
    e("s_waitcnt lgkmcnt(0)"); e("s_barrier")
    for f in range(6): e(f"ds_read_b128 {vr(QF+16*(f//2)+8+4*(f&1),4)}, v{vQR} offset:{1024*f}")
    for j in range(8): e(f"v_cvt_pk_bf16_f32 v{QF+32+j}, v{ACC+80+2*j}, v{ACC+80+2*j+1}")
    z = [f"v_mov_b32 v{ACC+r}, 0" for r in range(96)]
    for x in z[:24]: e(x)
    e("s_waitcnt lgkmcnt(0)")
    t24 = load_ops(kx[24]); t24[0] = f"s_add_u32 m0, s{sWOFS}, {4*SLOT}"
    step("K", 0, "K", waits[20], t24 + load_ops(kx[25]), spread(z[24:], 0, 11))
    step("K", 1, "V", waits[21], load_ops(kx[26]), spread(softA(SS[0], False) + softB(SS[0], P), 2, 11))
    def av(i, n, sidx, extra=[]):
        step("V", P, kx[i + 1], n, load_ops(kx[i + LA]) + extra, spread(softA(SS[sidx]), 2, 11), pre=["s_nop 0"])
    def ak(i, n, sidx):
        step("K", sidx, kx[i + 1], n, load_ops(kx[i + LA]), merge({2: [rescale_chk()]}, spread(softB(SS[1 - sidx], P), 0, 11)))
    e(f"s_mov_b32 s{sCNT}, 6")
    lab("L_a")
    av(22, same(22, 4, 6), 1); ak(23, same(23, 4, 6), 0); av(24, same(24, 4, 6), 0); ak(25, same(25, 4, 6), 1)
    e(f"s_sub_u32 s{sCNT}, s{sCNT}, 1"); e(f"s_cmp_lg_u32 s{sCNT}, 0"); e("s_cbranch_scc1 L_a")
    pf = [f"s_mul_i32 s{sTMP}, s{sB}, 61440", f"buffer_load_dword v{vPF}, v{vPFA}, {sr(sWO)}, s{sTMP} offen"] if WARM else []
    av(46, waits[46], 1, pf); ak(47, waits[47], 0); av(48, waits[48], 0); ak(49, waits[49], 1)
    step("V", P, "V", waits[50], load_ops(kx[55]), spread(softA(SS[1]) + softB(SS[1], SS[0]), 2, 11), pre=["s_nop 0"])
    step("V", SS[0], "O0", waits[51], load_ops(kx[56]), pre=[rescale_chk()])
    cm("normalise + exchange")
    if PROF: stamp()
    e(f"v_add_f32 v{vL0}, v{vL0}, v{vL1}")
    e(f"v_mov_b32 v{vL1}, v{vL0}")
    e("s_nop 1")
    e(f"v_permlane32_swap_b32 v{vL0}, v{vL1}")
    e("s_nop 1")
    e(f"v_add_f32 v{vL0}, v{vL0}, v{vL1}")
    e(f"v_rcp_f32 v{vMX}, v{vL0}")
    e("s_nop 7")
    e(f"v_mov_b32 v{vMX+1}, v{vMX}")
    for rho in range(3):
        for r in range(16): e(f"v_pk_mul_f32 {vr(ACC+32*rho+2*r,2)}, {vr(ACC+32*rho+2*r,2)}, {vr(vMX,2)}")
        for k in range(16): e(f"v_cvt_pk_bf16_f32 v{QF+16*rho+k}, v{ACC+32*rho+2*k}, v{ACC+32*rho+2*k+1}")
        if rho == 0:
            for f in range(4): e(f"ds_write_b128 v{vEX}, {vr(QF+4*f,4)} offset:{1024*f}")
    if DEBUG == 2: dump(QF, 12)
    for rho in range(3):
        if rho:
            for f in range(4): e(f"ds_write_b128 v{vEX}, {vr(QF+16*rho+4*f,4)} offset:{1024*f}")
        e("s_waitcnt lgkmcnt(0)"); e("s_barrier")
        for f in range(4):
            e(f"ds_read_b128 {vr(F+16*rho+4*f,4)}, v{vEXR} offset:{1024*f}")
            e(f"ds_read_b128 {vr(F+48+16*rho+4*f,4)}, v{vEXR} offset:{16384+1024*f}")
        e("s_waitcnt lgkmcnt(0)")
        if rho < 2: e("s_barrier")
    cm("O phase")
    if PROF: stamp()
    def ocv(tn, so):
        o = [f"v_cvt_pk_bf16_f32 v{OP+8*tn+k}, v{OA+16*tn+2*k}, v{OA+16*tn+2*k+1}" for k in range(8)]
        return o + [f"buffer_store_dwordx4 {vr(OP+8*tn+4*k,4)}, v{vST}, {sr(sWS)}, s{so} offen offset:{2048*tn+1024*k} {ST_FLAGS}".rstrip() for k in range(2)]
    e(f"s_mov_b32 s{sSTO2}, 0x100000")
    e(f"s_mov_b32 s{sCNT}, 5")
    lab("L_o")
    for rho in range(4):
        valu = {}; mem = load_ops(f"O{(rho+1)%4}")
        if rho == 0: valu = spread(ocv(1, sSTO2), 2, 5)
        if rho == 3:
            mem = [f"s_cmp_le_u32 s{sCNT}, 2", f"s_cselect_b32 s{sWO+2}, 0, s{sWO+2}"] + mem + ocv(0, sSTO)[8:] + [f"s_mov_b32 s{sSTO2}, s{sSTO}", f"s_add_u32 s{sSTO}, s{sSTO}, 8192"]
            valu = spread(ocv(0, sSTO)[:8], 8, 9)
        step("O", rho, "O", same(52 + rho, 4, 5), mem, valu)
    e(f"s_sub_u32 s{sCNT}, s{sCNT}, 1"); e(f"s_cmp_lg_u32 s{sCNT}, 0"); e("s_cbranch_scc1 L_o")
    e("s_nop 15")
    for x in ocv(1, sSTO2): e(x)
    stamp()
    if FUSE: fused_reduce()
    stamp_out()
    lab("L_end")
    e("s_endpgm")
    for x in RARE: e(x)
    return K1

def fused_reduce():
    cm("fused reduction over the 16 head-pair partials of (blk,b); this WG owns chunks 10hp..10hp+9")
    sG, sR, sLO, sHI = sCUR, sPREV, sSOFF, sSOFF2
    e(f"s_lshl_b32 s{sG}, s{sBLK}, 3"); e(f"s_add_u32 s{sG}, s{sG}, s{sB}")
    e(f"s_lshl_b32 s{sTMP}, s{sG}, 4"); srd(sK, sPTR+22, sTMP, 16)
    e(f"s_mul_i32 s{sR}, s{sHP}, 10"); e(f"s_add_u32 s{sR}, s{sR}, s{sW}")
    e(f"s_mul_i32 s{sTMP}, s{sG}, 2621440"); e(f"s_lshl_b32 s{sCNT}, s{sR}, 10"); e(f"s_add_u32 s{sTMP}, s{sTMP}, s{sCNT}")
    srd(sV, sPTR+24, sTMP, 15*163840+9216)
    e(f"s_mul_i32 s{sTMP}, s{sB}, {128*2560}"); e(f"s_mul_i32 s{sCNT}, s{sBLK}, 1280"); e(f"s_add_u32 s{sTMP}, s{sTMP}, s{sCNT}")
    srd(sWQ, sPTR+20, sTMP, 128*2560-1280)
    e(f"v_and_b32 v4, 31, v{vLANE}"); e("v_mul_u32_u24 v4, 2560, v4"); e(f"v_lshl_add_u32 v4, v{vHF}, 4, v4")
    e(f"s_mov_b32 s{sLO}, 0x3f80"); e(f"s_mov_b32 s{sHI}, 0x3f800000")
    for r in range(16, 32): e(f"v_mov_b32 v{r}, 0")
    e("v_mov_b32 v5, 0"); e("v_mov_b32 v6, 1")
    e("s_waitcnt vmcnt(0)"); e("s_barrier")
    e(f"s_cmp_lg_u32 s{sW}, 0"); e("s_cbranch_scc1 L_rj")
    e("s_mov_b64 exec, 1")
    e(f"buffer_atomic_add v6, v5, {sr(sK)}, 0 offen sc0 sc1")
    e("s_waitcnt vmcnt(0)"); e("v_add_u32 v6, 1, v6")
    lab("L_rp")
    e("v_cmp_gt_u32 vcc, 16, v6"); e("s_cbranch_vccz L_rq")
    e("s_sleep 2")
    e(f"buffer_load_dword v6, v5, {sr(sK)}, 0 offen sc1")
    e("s_waitcnt vmcnt(0)"); e("s_branch L_rp")
    lab("L_rq")
    e("s_mov_b64 exec, -1")
    lab("L_rj")
    e("s_barrier")
    def loads(c):
        for hp in range(16):
            e(f"s_mov_b32 s{sTMP}, {hp*163840+8192*c}")
            e(f"buffer_load_dwordx4 {vr(48+64*c+4*hp,4)}, v{vST}, {sr(sV)}, s{sTMP} offen sc1")
    def summ(c, extra):
        a = 16 + 8 * c
        e(f"s_mul_i32 s{sTMP}, s{sR}, 1639"); e(f"s_lshr_b32 s{sTMP}, s{sTMP}, 16")
        e(f"s_mul_i32 s{sCNT}, s{sTMP}, {81920-1280}"); e(f"s_lshl_b32 s{sTMP}, s{sR}, 5"); e(f"s_add_u32 s{sCNT}, s{sCNT}, s{sTMP}")
        for hp in range(16):
            e(f"s_waitcnt vmcnt({15-hp+extra})")
            for k in range(4):
                e(f"v_dot2c_f32_bf16 v{a+2*k}, s{sLO}, v{48+64*c+4*hp+k}"); e(f"v_dot2c_f32_bf16 v{a+2*k+1}, s{sHI}, v{48+64*c+4*hp+k}")
        e("s_nop 2")
        for k in range(4): e(f"v_cvt_pk_bf16_f32 v{32+4*c+k}, v{a+2*k}, v{a+2*k+1}")
        e(f"buffer_store_dwordx4 {vr(32+4*c,4)}, v4, {sr(sWQ)}, s{sCNT} offen")
    loads(0)
    e(f"s_cmp_lt_u32 s{sW}, 2"); e("s_cbranch_scc1 L_r2")
    summ(0, 0)
    e("s_branch L_r3")
    lab("L_r2")
    loads(1); summ(0, 16)
    e(f"s_add_u32 s{sR}, s{sR}, 8")
    summ(1, 1)
    lab("L_r3")

def dump(base, nfrag):
    e(f"s_lshl_b32 s{sTMP}, s2, 3"); e(f"s_add_u32 s{sTMP}, s{sTMP}, s{sW}")
    e(f"s_mul_i32 s{sTMP}, s{sTMP}, {nfrag*1024}")
    e(f"s_add_u32 s{sTMP}, s{sTMP}, 0x4000000")
    srd(sWS, sPTR+24, sTMP, nfrag*1024)
    for f in range(nfrag):
        e(f"s_mov_b32 s{sTMP}, {1024*f}")
        e(f"buffer_store_dwordx4 {vr(base+4*f,4)}, v{vST}, {sr(sWS)}, s{sTMP} offen")
    e("s_waitcnt vmcnt(0)")
    e("s_endpgm")

def kernel2():
    K2 = "reduce_kernel"
    L.append(f".globl {K2}\n.p2align 8\n.type {K2},@function\n{K2}:")
    RW = int(OPT.get('rw',4)); NPG = 160//RW; MG = -(-(1<<20)//NPG)
    assert all((x*MG)>>20 == x//NPG for x in range(2560//RW+16))
    e(f"s_cmp_ge_u32 s2, {0 if int(OPT.get('empty',0))&2 else 2560//RW}")
    e("s_cbranch_scc1 L_end2")
    e("s_load_dwordx2 s[4:5], s[0:1], 80")
    e("s_load_dwordx2 s[6:7], s[0:1], 96")
    e(f"s_mul_i32 s16, s2, {MG}"); e("s_lshr_b32 s16, s16, 20")
    e(f"s_mul_i32 s17, s16, {NPG}"); e("s_sub_u32 s17, s2, s17")
    e("v_lshrrev_b32 v1, 6, v0")
    e("s_nop 0")
    e("v_readfirstlane_b32 s18, v1")
    e(f"s_mul_i32 s17, s17, {RW}")
    e("s_nop 1")
    e("s_add_u32 s17, s17, s18")
    e("v_and_b32 v2, 63, v0")
    e("v_lshlrev_b32 v3, 4, v2")
    e("s_mul_i32 s19, s16, 2621440")
    e("s_lshl_b32 s20, s17, 10"); e("s_add_u32 s19, s19, s20")
    e("s_waitcnt lgkmcnt(0)")
    e("s_add_u32 s8, s6, s19"); e("s_addc_u32 s9, s7, 0"); e("s_and_b32 s9, s9, 0xffff")
    e(f"s_mov_b32 s10, {15*163840+1024}"); e("s_mov_b32 s11, 0x20000")
    e("s_mov_b32 s21, 0")
    for hp in range(16):
        e(f"buffer_load_dwordx4 {vr(16+4*hp,4)}, v3, s[8:11], s21 offen {RD_FLAGS}".rstrip())
        if hp < 15: e("s_add_u32 s21, s21, 163840")
    e("s_mov_b32 s12, s4"); e("s_and_b32 s13, s5, 0xffff"); e("s_mov_b32 s14, 2621440"); e("s_mov_b32 s15, 0x20000")
    e("s_mul_i32 s22, s17, 1639"); e("s_lshr_b32 s22, s22, 16")
    e("s_mul_i32 s23, s22, 40"); e("s_sub_u32 s23, s17, s23")
    e("s_and_b32 s24, s16, 7"); e("s_lshl_b32 s24, s24, 2"); e("s_add_u32 s24, s24, s22")
    e("s_mul_i32 s24, s24, 81920")
    e("s_lshr_b32 s25, s16, 3"); e("s_mul_i32 s25, s25, 1280"); e("s_add_u32 s24, s24, s25")
    e("s_lshl_b32 s23, s23, 5"); e("s_add_u32 s24, s24, s23")
    e("v_and_b32 v4, 31, v2"); e("v_mul_u32_u24 v4, 2560, v4")
    e("v_lshrrev_b32 v5, 5, v2"); e("v_lshl_add_u32 v4, v5, 4, v4")
    e("s_mov_b32 s26, 0xffff0000")
    for hp in range(16):
        e(f"s_waitcnt vmcnt({15-hp})")
        for k in range(4):
            src = 16 + 4 * hp + k
            if hp == 0:
                e(f"v_lshlrev_b32 v{8+2*k}, 16, v{src}"); e(f"v_and_b32 v{9+2*k}, s26, v{src}")
            else:
                e(f"v_lshlrev_b32 v6, 16, v{src}"); e(f"v_and_b32 v7, s26, v{src}")
                e(f"v_add_f32 v{8+2*k}, v{8+2*k}, v6"); e(f"v_add_f32 v{9+2*k}, v{9+2*k}, v7")
    for k in range(4): e(f"v_cvt_pk_bf16_f32 v{16+k}, v{8+2*k}, v{9+2*k}")
    e("buffer_store_dwordx4 v[16:19], v4, s[12:15], s24 offen")
    lab("L_end2")
    e("s_endpgm")
    return K2

import struct
def f32hex(x): return "%08x" % struct.unpack("<I", struct.pack("<f", x))[0]

def desc(name, nv, ns):
    return f""".amdhsa_kernel {name}
  .amdhsa_next_free_vgpr {nv}
  .amdhsa_next_free_sgpr {ns}
  .amdhsa_accum_offset {(nv+3)//4*4}
  .amdhsa_group_segment_fixed_size 0
  .amdhsa_kernarg_size 104
  .amdhsa_user_sgpr_count 2
  .amdhsa_user_sgpr_kernarg_segment_ptr 1
  .amdhsa_system_sgpr_workgroup_id_x 1
.end_amdhsa_kernel"""

head = open(f"cdna_kernels/{NAME}.s.ref").read().split("; Override launch")[0]
k1 = kernel1(); k2 = None if FUSE else kernel2()
txt = head
txt += f"; @launch kernel={k1} grid=(256,1,1) block=(512,1,1) lds={LDS_BYTES}\n"
if k2: txt += f"; @launch kernel={k2} grid=({2560//int(OPT.get('rw',4))},1,1) block=({64*int(OPT.get('rw',4))},1,1) lds=0\n"
txt += '.amdgcn_target "amdgcn-amd-amdhsa--gfx950"\n.text\n'
txt += "\n".join(L) + "\n"
txt += '.section .rodata,"a"\n.p2align 6\n' + desc(k1, 256, 100) + ("\n.p2align 6\n" + desc(k2, 80, 32) if k2 else "") + "\n"
open(OUT, "w").write(txt)
print("wrote", OUT, len(txt), "bytes", len(L), "lines")
```

```python
import sys
NAME = "concat_heads__gqa_block_cached__gqa_block_cached__near_ridge"
OUT = sys.argv[1] if len(sys.argv) > 1 else f"cdna_kernels/{NAME}.s"
OPT = dict(a.split("=") for a in sys.argv[2:])
DEBUG = int(OPT.get("debug", 0))
ST_FLAGS = OPT.get("st", "").replace("+", " ")
KV_FLAGS = OPT.get("kv", "").replace("+", " ")
RD_FLAGS = OPT.get("rd", "").replace("+", " ")
WARM = int(OPT.get("warm", 1))
PRIO = int(OPT.get("prio", 0))
KVPF = int(OPT.get("kvpf", 0))
PFSH = int(OPT.get("pfsh", 2))
PFO = int(OPT.get("pfo", 36864))
PF_FLAGS = OPT.get("pff", "").replace("+", " ")
PFS = int(OPT.get("pfs", 0))
sPF = 4; sPFO = 3; vPFK = 11; vPFW = 19
FUSE = int(OPT.get("fuse", 1))
if FUSE and "sc1" not in ST_FLAGS: ST_FLAGS = "sc1"
PROF = int(OPT.get("prof", 0))
NODMA = int(OPT.get("nodma", 0)); NOMFMA = int(OPT.get("nomfma", 0))
nstamp = [0]
def stamp():
    if not PROF: return
    e("s_waitcnt lgkmcnt(0)")
    e("s_memrealtime s[96:97]")
    e("s_memtime s[98:99]")
    e("s_waitcnt lgkmcnt(0)")
    e(f"s_mov_b32 s{80+nstamp[0]}, s96")
    e(f"s_mov_b32 s{88+nstamp[0]}, s98")
    nstamp[0] += 1
def stamp_out():
    if not PROF: return
    e("s_waitcnt vmcnt(0)")
    stamp()
    for i in range(16): e(f"v_writelane_b32 v2, s{80+i}, {i}")
    e(f"s_lshl_b32 s{sTMP}, s2, 3"); e(f"s_add_u32 s{sTMP}, s{sTMP}, s{sW}")
    e(f"s_lshl_b32 s{sTMP}, s{sTMP}, 6")
    e(f"s_add_u32 s{sTMP}, s{sTMP}, 0x8000000")
    srd(sWS, sPTR+24, sTMP, 64)
    e(f"v_lshlrev_b32 v3, 2, v{vLANE}")
    e(f"buffer_store_dword v2, v3, {sr(sWS)}, 0 offen")
L = []
RARE = []
hr = [0]
def e(s):
    if NODMA and s.startswith("buffer_load") and " lds" in s and (NODMA == 1 or nstamp[0] >= 2): return
    if int(OPT.get("halfrd", 0)) and s.startswith("ds_read") and nstamp[0] >= 2:
        hr[0] += 1
        if hr[0] & 2: return
    if NOMFMA and (s.startswith("v_mfma") or s.startswith("ds_read") or s.startswith("v_exp") or s.startswith("v_fma") or s.startswith("v_max3")): return
    L.append(s if s.endswith(":") else "    " + s)
def lab(s): L.append(s + ":")
def cm(s): L.append("    ; " + s)

SLOT = 24576; NSLOT = 5; XA = SLOT * NSLOT
LDS_BYTES = XA + 32768
LA = 5

ACC = 160; QF = 112; SS = (80, 96); P = 72; AF = 48
vLANE, vHF, vT0, vT1, vT2, vT3 = 1, 2, 3, 4, 5, 6
vKREL, vVREL, vOREL = 8, 9, 10
vA = 12; vD = 16; vW = 20; vO = 24; vXO = 28; vXA = 32
vM, vMT, vL0, vL1, vMX, vMX2, vAL = 36, 37, 38, 39, 40, 41, 42
vST = 43; vEX = 44; vEXR = 45; vPF = 46; vPFA = 47
sK, sV, sWQ, sWO, sX, sWS = 8, 12, 16, 20, 24, 28
sCUR, sPREV, sWOFS, sW, sHALF, sQG = 32, 33, 34, 35, 36, 37
sCNT, sSOFF, sSOFF2, sXOFF, sC, sTMP, sTMP2, sXM0 = 38, 39, 40, 41, 42, 43, 44, 45
sSTO = 46; sSTO2 = 47
sPTR = 48
sBLK, sB, sHP, sH = 76, 77, 78, 79
sVOFF, sRS = 74, 75
OA = QF; OP = QF + 32; F = ACC
XS = (112, 80); vXB = 72; vWREL = 76; vQW = 77; vQR = 78; QXB = 106496

def vr(b, n): return f"v[{b}:{b+n-1}]"
def sr(b, n=4): return f"s[{b}:{b+n-1}]"

class VM:
    def __init__(s): s.ops = []
    def issue(s, tag, n=1): s.ops += [tag] * n
    def need(s, tags):
        for t in tags: assert t in s.ops, t
        last = max(i for i, t in enumerate(s.ops) if t in tags)
        return len(s.ops) - 1 - last
vm = VM()

def rotate_ops():
    return [f"s_mov_b32 s{sPREV}, s{sCUR}", f"s_add_u32 s{sCUR}, s{sCUR}, {SLOT}",
            f"s_cmp_eq_u32 s{sCUR}, {SLOT*NSLOT}", f"s_cselect_b32 s{sCUR}, 0, s{sCUR}"]

def dma3(srd, v0, soff, flags=""):
    return [f"buffer_load_dwordx4 v{v0+j}, {sr(srd)}, s{soff} offen offset:{1024*j} {flags} lds" for j in range(3)]

def load_ops(kind):
    if kind is None: return []
    ops = [f"s_add_u32 m0, s{sPREV}, s{sWOFS}", "s_nop 0"]
    if kind == "W":
        ops += dma3(sWQ, vW, sSOFF) + [f"s_add_u32 s{sSOFF}, s{sSOFF}, {32*12288}"]
    elif kind == "K":
        ops += dma3(sK, vD, sSOFF2, KV_FLAGS) + [f"s_add_u32 s{sSOFF2}, s{sSOFF2}, 12288\n    s_cmp_eq_u32 s{sSOFF2}, 196608\n    s_cselect_b32 s{sSOFF2}, 0, s{sSOFF2}"]
    elif kind == "V":
        ops += dma3(sV, vD, sVOFF, KV_FLAGS) + [f"s_add_u32 s{sVOFF}, s{sVOFF}, 12288\n    s_cmp_eq_u32 s{sVOFF}, 196608\n    s_cselect_b32 s{sVOFF}, 0, s{sVOFF}"]
    elif kind[0] == "O":
        rho = int(kind[1])
        ops += dma3(sWO, vO, sSOFF)
        ops += [f"s_add_u32 s{sSOFF}, s{sSOFF}, {96*1280}"] if rho < 3 else [f"s_sub_u32 s{sSOFF}, s{sSOFF}, {3*96*1280-256}"]
    return ops

def x_ops(xslot):
    return [f"s_add_u32 m0, s{sXM0}, {xslot*16384}", "s_nop 0",
            f"buffer_load_dwordx4 v{vXO}, {sr(sX)}, s{sXOFF} offen lds",
            f"buffer_load_dwordx4 v{vXO+1}, {sr(sX)}, s{sXOFF} offen offset:1024 lds",
            f"s_add_u32 s{sXOFF}, s{sXOFF}, 128"]
def x_reads(k):
    return [f"ds_read_b128 {vr(XS[k&1]+16*u+4*s_,4)}, v{(vXB, vXA)[u]+s_} offset:{(k&1)*16384}" for s_ in range(4) for u in range(2)]

def addr_ops(kind):
    if kind == "W": return [f"v_add_u32 v{vA}, s{sCUR}, v{vWREL}", f"v_xor_b32 v{vA+1}, 16, v{vA}"]
    if kind in ("W", "V"):
        return [f"v_add_u32 v{vA}, s{sCUR}, v{vVREL}", f"v_xor_b32 v{vA+1}, 16, v{vA}",
                f"v_xor_b32 v{vA+2}, 64, v{vA}", f"v_xor_b32 v{vA+3}, 0x50, v{vA}"]
    if kind == "K":
        return [f"v_add_u32 v{vA}, s{sCUR}, v{vKREL}"] + [f"v_xor_b32 v{vA+m}, {32*m}, v{vA}" for m in range(1, 4)]
    return [f"v_add_u32 v{vA}, s{sCUR}, v{vOREL}", f"v_xor_b32 v{vA+1}, 64, v{vA}"]

def frag_reads(kind, m):
    d = AF + 4 * (m % 6)
    if kind == "W":
        if m >= 6: return []
        v, t = divmod(m, 3)
        return [f"ds_read_b64_tr_b16 {vr(d+2*q,2)}, v{vA+q} offset:{128*t + 6144*v + 1536*q}" for q in range(2)]
    if kind == "V":
        v, t = divmod(m, 6)
        return [f"ds_read_b64_tr_b16 {vr(d+2*q,2)}, v{vA + q + 2*(t&1)} offset:{128*(t>>1) + 6144*v + 1536*q}" for q in range(2)]
    if kind == "K":
        return [f"ds_read_b128 {vr(d,4)}, v{vA+(m&3)} offset:{128*(m>>2)}"]
    tn, ee = divmod(m, 6)
    return [f"ds_read_b64_tr_b16 {vr(d+2*q,2)}, v{vA+tn} offset:{4096*ee+1024*q}" for q in range(2)]

def mfma(kind, m, par):
    d = vr(AF + 4 * (m % 6), 4)
    if int(OPT.get("m16", 0)):
        def mm(a, b, z=False): return f"v_mfma_f32_16x16x32_bf16 {vr(a,4)}, {d}, {vr(b,4)}, {'0' if z else vr(a,4)}"
        if kind == "W": b = SS[par[0]] + 8 * par[1]; return mm(ACC+8*m, b) + "\n    " + mm(ACC+8*m+4, b+4)
        if kind == "V": return mm(ACC+8*m, par) + "\n    " + mm(ACC+8*m+4, par+4)
        if kind == "K": a = SS[par] + 8 * (m & 1); return mm(a, QF+8*(m>>1), m < 2) + "\n    " + mm(a+4, QF+8*(m>>1)+4, m < 2)
        a = OA + 8 * (m // 3); b = F + 24 * par + 8 * (m % 3); z = par == 0 and m % 3 == 0
        return mm(a, b, z) + "\n    " + mm(a+4, b+4, z)
    if kind == "W":
        v, t = divmod(m, 6); a = vr(ACC + 16 * t, 16); d = vr(AF + 4 * (3 * v + m % 3), 4)
        return f"v_mfma_f32_32x32x16_bf16 {a}, {d}, {vr(XS[par[0]]+16*(t//3)+4*(2*par[1]+v),4)}, {a}"
    if kind == "V":
        v, t = divmod(m, 6); a = vr(ACC + 16 * t, 16)
        return f"v_mfma_f32_32x32x16_bf16 {a}, {d}, {vr(par+4*v,4)}, {a}"
    if kind == "K":
        a = vr(SS[par], 16)
        return f"v_mfma_f32_32x32x16_bf16 {a}, {d}, {vr(QF+4*m,4)}, {'0' if m == 0 else a}"
    tn, ee = divmod(m, 6); a = vr(OA + 16 * tn, 16)
    return f"v_mfma_f32_32x32x16_bf16 {a}, {d}, {vr(F+4*(6*par+ee),4)}, {'0' if (par == 0 and ee == 0) else a}"

def spread(items, lo, hi):
    n = hi - lo + 1; d = {}
    for i, x in enumerate(items): d.setdefault(lo + i * n // max(len(items), 1), []).append(x)
    return d

def step(kind, par, nxt, n, mem, valu=None, xrd=None, pre=None):
    k0 = kind[0]; nk = nxt[0] if nxt else None
    per = 1 if k0 == "K" else 2
    q = [f"f{m}" for m in range(6) for _ in range(per)]
    valu = valu or {}
    for x in (pre or []): e(x)
    mem = list(mem)
    for m in range(12):
        tag = f"f{m}" if k0 != "W" else f"f{3*(m//6)+m%3}"
        if tag in q:
            last = max(i for i, t in enumerate(q) if t == tag)
            e(f"s_waitcnt lgkmcnt({min(15, len(q)-1-last)})")
            q = q[last + 1:]
        e(mfma(k0, m, par))
        if m < 6:
            for r in frag_reads(k0, m + 6): e(r); q.append(f"f{m+6}")
        if m == 6:
            for x in rotate_ops(): e(x)
        if m == 7 and nk:
            for x in addr_ops(nk): e(x)
        for x in valu.get(m, []): e(x)
        if m == 8:
            e(f"s_waitcnt vmcnt({n}) lgkmcnt(0)"); e("s_barrier"); q = []
            for x in (xrd or []): e(x)
            if nk:
                for mm in range(3):
                    for r in frag_reads(nk, mm): e(r)
        if m >= 9 and xrd: e("s_waitcnt lgkmcnt(12)")
        if m >= 9 and nk:
            for r in frag_reads(nk, m - 6): e(r)
        if m >= 8:
            nb = (sum(x.startswith("buffer") for x in mem) + (11 - m)) // (12 - m) if m > 8 else 0
            while mem and (m == 11 or nb > 0 or not mem[0].startswith("buffer")):
                x = mem.pop(0); e(x)
                if x.startswith("buffer"): nb -= 1

rid = [0]
def softA(S, setflag=True, nexp=8):
    rid[0] += 1; r = rid[0]
    o = [f"v_max3_f32 v{vMX}, v{S}, v{S+1}, v{S+2}"]
    o += [f"v_max3_f32 v{vMX}, v{vMX}, v{S+3+2*k}, v{S+4+2*k}" for k in range(6)]
    o += [f"v_max_f32 v{vMX}, v{vMX}, v{S+15}", f"v_mov_b32 v{vMX2}, v{vMX}\n    s_nop 1\n    v_permlane32_swap_b32 v{vMX}, v{vMX2}\n    s_nop 1",
          f"v_max_f32 v{vMX}, v{vMX}, v{vMX2}", f"v_mul_f32 v{vMX}, s{sC}, v{vMX}",
          f"v_cmp_gt_f32 vcc, v{vMX}, v{vMT}\n    s_cbranch_vccnz L_ra{r}\nL_rb{r}:\n    s_nop 0"]
    RARE.extend([f"L_ra{r}:", f"v_max_f32 v{vMX}, v{vMX}, v{vM}", f"v_sub_f32 v{vAL}, v{vM}, v{vMX}", f"v_exp_f32 v{vAL}, v{vAL}",
                 f"v_mov_b32 v{vM}, v{vMX}", f"v_add_f32 v{vMT}, s{sTMP2}, v{vMX}", f"v_mul_f32 v{vL0}, v{vL0}, v{vAL}",
                 f"v_mul_f32 v{vL1}, v{vL1}, v{vAL}"] + ([f"s_mov_b32 s{sRS}, 1"] if setflag else []) + [f"s_branch L_rb{r}"])
    o += [f"v_fma_f32 v{S+k}, v{S+k}, s{sC}, -v{vM}" for k in range(16)]
    o += [f"v_exp_f32 v{S+k}, v{S+k}" for k in range(nexp)]
    return o
def softB(S, Pd, nexp=8):
    o = [f"v_exp_f32 v{S+k}, v{S+k}" for k in range(nexp, 16)]
    for k in range(8):
        o += [f"v_cvt_pk_bf16_f32 v{Pd+k}, v{S+2*k}, v{S+2*k+1}"]
        if k < 6: o += [f"v_add_f32 v{vL0}, v{vL0}, v{S+2*k}", f"v_add_f32 v{vL1}, v{vL1}, v{S+2*k+1}"]
    for k in (6, 7): o += [f"v_add_f32 v{vL0}, v{vL0}, v{S+2*k}", f"v_add_f32 v{vL1}, v{vL1}, v{S+2*k+1}"]
    return o
def rescale_chk():
    rid[0] += 1; r = rid[0]
    RARE.extend([f"L_ra{r}:", "s_nop 15"] + [f"v_mul_f32 v{ACC+k}, v{ACC+k}, v{vAL}" for k in range(96)]
                + [f"s_mov_b32 s{sRS}, 0", "s_nop 1", f"s_branch L_rb{r}"])
    return f"s_cmp_lg_u32 s{sRS}, 0\n    s_cbranch_scc1 L_ra{r}\nL_rb{r}:\n    s_nop 0"
def merge(*ds):
    o = {}
    for d in ds:
        for k, v in d.items(): o.setdefault(k, []).extend(v)
    return o

def srd(d, ptr, off_s, nbytes):
    e(f"s_add_u32 s{d}, s{ptr}, s{off_s}")
    e(f"s_addc_u32 s{d+1}, s{ptr+1}, 0")
    e(f"s_and_b32 s{d+1}, s{d+1}, 0xffff")
    e(f"s_mov_b32 s{d+2}, {nbytes}" if isinstance(nbytes, int) else f"s_mov_b32 s{d+2}, s{nbytes[0]}")
    e(f"s_mov_b32 s{d+3}, 0x20000")

def swz(dst, r, tmp):
    e(f"v_bfe_u32 v{dst}, v{r}, 2, 2")
    e(f"v_bfe_u32 v{tmp}, v{r}, 1, 1")
    e(f"v_lshl_or_b32 v{dst}, v{tmp}, 2, v{dst}")

def kernel1():
    K1 = "attn_kernel"
    L.append(f".globl {K1}\n.p2align 8\n.type {K1},@function\n{K1}:")
    e(f"s_cmp_ge_u32 s2, {0 if int(OPT.get('empty',0))&1 else 256}")
    e("s_cbranch_scc1 L_end")
    if OPT.get("halfwg"):
        e(f"s_and_b32 s3, s2, {OPT['halfwg']}"); e("s_cbranch_scc1 L_end")
    e(f"s_load_dwordx16 s[{sPTR}:{sPTR+15}], s[0:1], 0")
    e(f"s_load_dwordx8 s[{sPTR+16}:{sPTR+23}], s[0:1], 64")
    e(f"s_load_dwordx2 s[{sPTR+24}:{sPTR+25}], s[0:1], 96")
    stamp()
    e(f"v_lshrrev_b32 v{vT0}, 6, v0")
    e(f"v_and_b32 v{vLANE}, 63, v0")
    e(f"v_readfirstlane_b32 s{sW}, v{vT0}")
    e(f"v_lshrrev_b32 v{vHF}, 5, v{vLANE}")
    e(f"s_bfe_u32 s{sBLK}, s2, 0x10002")
    e(f"s_bfe_u32 s{sB}, s2, 0x30005")
    e(f"s_and_b32 s{sHP}, s2, 3")
    e(f"s_lshl_b32 s{sHP}, s{sHP}, 2")
    e(f"s_bfe_u32 s{sTMP}, s2, 0x20003")
    e(f"s_add_u32 s{sHP}, s{sHP}, s{sTMP}")
    e(f"s_lshr_b32 s{sHALF}, s{sW}, 2")
    e(f"s_and_b32 s{sQG}, s{sW}, 3")
    e(f"s_lshl_b32 s{sH}, s{sHP}, 1")
    e(f"s_add_u32 s{sH}, s{sH}, s{sHALF}")
    e(f"s_mul_i32 s{sWOFS}, s{sW}, 3072")
    e(f"s_lshl_b32 s{sXM0}, s{sW}, 11")
    e(f"s_add_u32 s{sXM0}, s{sXM0}, {XA}")
    e(f"s_mov_b32 s{sC}, 0x{f32hex(192**-0.5 * 1.4426950408889634)}")
    e(f"s_mov_b32 s{sTMP2}, 0x41000000")
    e(f"s_mul_i32 s{sTMP}, s{sQG}, 24")
    for j in range(3):
        e(f"v_lshrrev_b32 v{vT0}, 3, v{vLANE}")
        e(f"v_add_u32 v{vT0}, s{sTMP}, v{vT0}")
        if j: e(f"v_add_u32 v{vT0}, {8*j}, v{vT0}")
        e(f"v_mul_u32_u24 v{vT1}, 43, v{vT0}")
        e(f"v_lshrrev_b32 v{vT1}, 7, v{vT1}")
        swz(vT2, vT1, vT3)
        e(f"v_and_b32 v{vT3}, 7, v{vLANE}")
        e(f"v_xor_b32 v{vT2}, v{vT2}, v{vT3}")
        e(f"v_lshlrev_b32 v{vT2}, 4, v{vT2}")
        e(f"v_lshl_add_u32 v{vD+j}, v{vT0}, 7, v{vT2}")
        if j: e(f"v_subrev_u32 v{vD+j}, {1024*j}, v{vD+j}")
        e(f"v_mul_u32_u24 v{vT1}, {12288-384}, v{vT1}")
        e(f"v_add_u32 v{vW+j}, v{vD+j}, v{vT1}")
    e(f"v_lshrrev_b32 v{vT0}, 4, v{vLANE}")
    e(f"v_lshlrev_b32 v{vT1}, 2, v{vT0}")
    e(f"v_and_b32 v{vT2}, 15, v{vLANE}")
    e(f"v_xor_b32 v{vT1}, v{vT1}, v{vT2}")
    e(f"v_lshlrev_b32 v{vT1}, 4, v{vT1}")
    e(f"s_mul_i32 s{sTMP}, s{sW}, 12")
    e(f"v_add_u32 v{vT0}, s{sTMP}, v{vT0}")
    e(f"v_mul_u32_u24 v{vT0}, 1280, v{vT0}")
    e(f"v_add_u32 v{vO}, v{vT0}, v{vT1}")
    e(f"v_add_u32 v{vO+1}, {4*1280-1024}, v{vO}")
    e(f"v_add_u32 v{vO+2}, {2*(4*1280-1024)}, v{vO}")
    for pj in range(2):
        e(f"v_lshrrev_b32 v{vT0}, 4, v{vLANE}")
        if pj: e(f"v_add_u32 v{vT0}, 4, v{vT0}")
        e(f"v_and_b32 v{vT1}, 7, v{vLANE}")
        e(f"v_xor_b32 v{vT1}, v{vT1}, v{vT0}")
        e(f"v_lshlrev_b32 v{vT1}, 4, v{vT1}")
        e(f"s_lshl_b32 s{sTMP}, s{sW}, 4")
        e(f"v_lshrrev_b32 v{vT0}, 3, v{vLANE}")
        e(f"v_add_u32 v{vT0}, s{sTMP}, v{vT0}")
        e(f"v_mul_u32_u24 v{vT0}, 1280, v{vT0}")
        e(f"v_add_u32 v{vXO+pj}, v{vT0}, v{vT1}")
        if pj: e(f"v_add_u32 v{vXO+pj}, {8*1280-1024}, v{vXO+pj}")
    e("s_waitcnt lgkmcnt(0)")
    e(f"s_cmp_eq_u32 s{sBLK}, 0")
    for k in range(5):
        e(f"s_cselect_b64 s[{sPTR+2*k}:{sPTR+2*k+1}], s[{sPTR+2*k}:{sPTR+2*k+1}], s[{sPTR+10+2*k}:{sPTR+11+2*k}]")
    e(f"s_mul_i32 s{sTMP}, s{sB}, 163840"); srd(sX, sPTR, sTMP, 163840)
    e(f"s_mul_i32 s{sTMP}, s{sH}, 384")
    e(f"s_sub_u32 s{sCNT}, {640*12288}, s{sTMP}"); srd(sWQ, sPTR+6, sTMP, (sCNT,))
    e(f"s_mov_b32 s{sSOFF}, 0"); e(f"s_mov_b32 s{sXOFF}, 0"); e(f"s_mov_b32 s{sSOFF2}, 0"); e(f"s_mov_b32 s{sVOFF}, 0"); e(f"s_mov_b32 s{sRS}, 0")
    for i in range(LA):
        e(f"s_mov_b32 s{sPREV}, {SLOT*i}")
        if i < 2:
            for x in x_ops(i): e(x)
            vm.issue(f"x{i}", 2)
        for x in load_ops("W"): e(x)
        vm.issue(f"t{i}", 3)
    if WARM:
        e(f"v_mul_u32_u24 v{vT0}, 171, v0"); e(f"v_lshrrev_b32 v{vT0}, 10, v{vT0}")
        e(f"v_mul_u32_u24 v{vT1}, {12288-768}, v{vT0}")
        e(f"v_lshlrev_b32 v{vPFA}, 7, v0")
        e(f"v_add_u32 v{vPFW}, v{vT1}, v{vPFA}")
        e(f"s_mul_i32 s{sTMP}, s{sHP}, 768"); e(f"s_mul_i32 s{sCNT}, s{sB}, {20*12288}"); e(f"s_add_u32 s{sTMP}, s{sTMP}, s{sCNT}")
        e(f"s_add_u32 s{sTMP}, s{sTMP}, {160*12288}")
        srd(sWO, sPTR+6, sTMP, 19*12288+768)
        e(f"buffer_load_dword v{vPF}, v{vPFW}, {sr(sWO)}, 0 offen")
        e(f"s_add_u32 s{sTMP}, s{sTMP}, s{sCNT}"); e(f"s_add_u32 s{sTMP}, s{sTMP}, {160*12288}")
        srd(sPF, sPTR+6, sTMP, 39*12288+768)
        vm.issue("pf", 1)
    e(f"s_mov_b32 s{sCUR}, 0")
    ROT = int(OPT.get("rot", 1))
    if ROT:
        if ROT == 1:
            e(f"s_lshl_b32 s{sTMP}, s{sB}, 1"); e(f"s_add_u32 s{sTMP}, s{sTMP}, s{sH}"); e(f"s_add_u32 s{sTMP}, s{sTMP}, s{sBLK}")
        elif ROT == 2:
            e(f"s_mul_i32 s{sTMP}, s{sB}, 3"); e(f"s_mul_i32 s{sCNT}, s{sH}, 5"); e(f"s_add_u32 s{sTMP}, s{sTMP}, s{sCNT}")
            e(f"s_lshl_b32 s{sCNT}, s{sBLK}, 3"); e(f"s_add_u32 s{sTMP}, s{sTMP}, s{sCNT}")
        elif ROT == 3:
            e(f"s_lshl_b32 s{sTMP}, s{sB}, 1"); e(f"s_add_u32 s{sTMP}, s{sTMP}, s{sHP}")
        e(f"s_and_b32 s{sTMP}, s{sTMP}, 15"); e(f"s_mul_i32 s{sSOFF2}, s{sTMP}, 12288"); e(f"s_mov_b32 s{sVOFF}, s{sSOFF2}")
    e(f"s_lshl_b32 s{sTMP}, s{sB}, 5")
    e(f"s_add_u32 s{sTMP}, s{sTMP}, s{sH}")
    e(f"s_mul_i32 s{sTMP}, s{sTMP}, 196608")
    srd(sK, sPTR+2, sTMP, 196608); srd(sV, sPTR+4, sTMP, 196608)
    e(f"s_mul_i32 s{sTMP}, s{sHP}, 491520"); srd(sWO, sPTR+8, sTMP, 491520)
    e(f"s_lshl_b32 s{sTMP}, s{sBLK}, 3"); e(f"s_add_u32 s{sTMP}, s{sTMP}, s{sB}")
    e(f"s_lshl_b32 s{sTMP}, s{sTMP}, 4"); e(f"s_add_u32 s{sTMP}, s{sTMP}, s{sHP}")
    e(f"s_mul_i32 s{sTMP}, s{sTMP}, 163840")
    e(f"s_mul_i32 s{sCNT}, s{sQG}, 40960"); e(f"s_add_u32 s{sTMP}, s{sTMP}, s{sCNT}")
    srd(sWS, sPTR+24, sTMP, 40960)
    e(f"s_lshl_b32 s{sSTO}, s{sHALF}, 12")
    e(f"v_lshlrev_b32 v{vST}, 4, v{vLANE}")
    e(f"s_mul_i32 s{sTMP}, s{sHALF}, 12288")
    e(f"v_and_b32 v{vT0}, 0x13, v{vLANE}")
    e(f"v_bfe_u32 v{vT1}, v{vLANE}, 2, 1"); e(f"v_lshl_or_b32 v{vT0}, v{vT1}, 3, v{vT0}")
    e(f"v_bfe_u32 v{vT1}, v{vLANE}, 3, 1"); e(f"v_lshl_or_b32 v{vT0}, v{vT1}, 2, v{vT0}")
    swz(vT1, vT0, vT2)
    e(f"v_xor_b32 v{vT1}, v{vT1}, v{vHF}")
    e(f"v_lshlrev_b32 v{vT1}, 4, v{vT1}")
    e(f"v_mul_u32_u24 v{vT0}, 384, v{vT0}")
    e(f"v_add3_u32 v{vKREL}, v{vT0}, v{vT1}, s{sTMP}")
    e(f"s_and_b32 s{sCNT}, s{sQG}, 1"); e(f"s_lshl_b32 s{sCNT}, s{sCNT}, 6")
    e(f"v_xor_b32 v{vKREL}, s{sCNT}, v{vKREL}")
    e(f"v_bfe_u32 v{vT0}, v{vLANE}, 2, 2")
    e(f"v_lshl_add_u32 v{vT0}, v{vHF}, 3, v{vT0}")
    e(f"v_mul_u32_u24 v{vT0}, 384, v{vT0}")
    e(f"v_bfe_u32 v{vT1}, v{vLANE}, 3, 1"); e(f"v_lshl_add_u32 v{vT0}, v{vT1}, 6, v{vT0}")
    e(f"v_bfe_u32 v{vT1}, v{vLANE}, 4, 1"); e(f"v_xor_b32 v{vT1}, v{vT1}, v{vHF}"); e(f"v_lshl_add_u32 v{vT0}, v{vT1}, 5, v{vT0}")
    e(f"v_and_b32 v{vT1}, 1, v{vLANE}"); e(f"v_lshl_add_u32 v{vT0}, v{vT1}, 4, v{vT0}")
    e(f"v_bfe_u32 v{vT1}, v{vLANE}, 1, 1"); e(f"v_lshl_add_u32 v{vT0}, v{vT1}, 3, v{vT0}")
    e(f"v_add_u32 v{vVREL}, s{sTMP}, v{vT0}")
    e(f"v_xor_b32 v{vWREL}, s{sCNT}, v{vVREL}")
    e(f"v_bfe_u32 v{vT0}, v{vLANE}, 2, 2")
    e(f"v_lshlrev_b32 v{vT2}, 2, v{vT0}")
    e(f"v_lshl_add_u32 v{vT0}, v{vHF}, 3, v{vT0}")
    e(f"v_lshlrev_b32 v{vT0}, 8, v{vT0}")
    e(f"v_bfe_u32 v{vT1}, v{vLANE}, 4, 1"); e(f"v_lshlrev_b32 v{vT1}, 1, v{vT1}")
    e(f"v_and_b32 v{vT3}, 1, v{vLANE}"); e(f"v_or_b32 v{vT1}, v{vT1}, v{vT3}")
    e(f"s_lshl_b32 s{sTMP}, s{sHALF}, 3")
    e(f"v_or_b32 v{vT1}, s{sTMP}, v{vT1}")
    e(f"v_xor_b32 v{vT1}, v{vT1}, v{vT2}")
    e(f"v_lshl_add_u32 v{vT0}, v{vT1}, 4, v{vT0}")
    e(f"v_bfe_u32 v{vT1}, v{vLANE}, 1, 1"); e(f"v_lshl_add_u32 v{vOREL}, v{vT1}, 3, v{vT0}")
    e(f"v_and_b32 v{vT0}, 31, v{vLANE}")
    e(f"v_bfe_u32 v{vT1}, v{vLANE}, 1, 3")
    e(f"v_xor_b32 v{vT1}, v{vT1}, v{vHF}")
    e(f"v_lshlrev_b32 v{vT1}, 4, v{vT1}")
    e(f"v_lshl_add_u32 v{vT0}, v{vT0}, 7, v{vT1}")
    e(f"s_lshl_b32 s{sTMP}, s{sQG}, 12"); e(f"s_add_u32 s{sTMP}, s{sTMP}, {XA}")
    e(f"v_add_u32 v{vXA}, s{sTMP}, v{vT0}")
    for m in range(1, 4): e(f"v_xor_b32 v{vXA+m}, {32*m}, v{vXA}")
    for m in range(4): e(f"v_xor_b32 v{vXB+m}, 0x1000, v{vXA+m}")
    e(f"s_mul_i32 s{sCNT}, s{sW}, 6144"); e(f"s_add_u32 s{sCNT}, s{sCNT}, {QXB}"); e(f"v_add_u32 v{vQW}, s{sCNT}, v{vST}")
    e(f"s_xor_b32 s{sCNT}, s{sW}, 1"); e(f"s_mul_i32 s{sCNT}, s{sCNT}, 6144"); e(f"s_add_u32 s{sCNT}, s{sCNT}, {QXB}"); e(f"v_add_u32 v{vQR}, s{sCNT}, v{vST}")
    e(f"v_add_u32 v{vEXR}, s{sTMP}, v{vST}")
    e(f"s_lshl_b32 s{sTMP}, s{sW}, 12"); e(f"s_add_u32 s{sTMP}, s{sTMP}, {XA}")
    e(f"v_add_u32 v{vEX}, s{sTMP}, v{vST}")
    for r in range(96): e(f"v_mov_b32 v{ACC+r}, 0")
    e(f"v_mov_b32 v{vM}, 0xf149f2ca"); e(f"v_mov_b32 v{vMT}, 0xf149f2ca")
    e(f"v_mov_b32 v{vL0}, 0"); e(f"v_mov_b32 v{vL1}, 0")


    kinds = ["W"] * 20 + ["K", "K"] + ["V", "K"] * 14 + ["V", "V"] + ["O0", "O1", "O2", "O3"] * 5
    NT = len(kinds); assert NT == 72
    WOPF = 46
    first = vm.need(["t0", "x0"])
    if WARM: vm.issue("pf", 2)
    waits = []
    for i in range(NT):
        if kinds[i] == "O0": vm.issue("st", 2)
        need = ([f"t{i+1}"] if i + 1 < NT + 1 else []) + ([f"x{(i+1)//2}"] if i < 18 and i % 2 == 1 else [])
        waits.append(vm.need(need) - (int(OPT.get("tight", 0)) if 20 <= i < 46 else 0))
        if i < 16 and i % 2 == 0: vm.issue(f"x{i//2+2}", 2)
        if i == 20: vm.issue("t24", 3)
        if i != 19: vm.issue(f"t{i+LA}", 3)
        if i == WOPF and WARM: vm.issue("pf", 1)
        if KVPF and i < max(12, KVPF): vm.issue("pf", 1)
        if kinds[i] == "O3": vm.issue("st", 2)
    kx = kinds + ["O0", "O1", "O2", "O3", "O0", "O1"]
    def same(idx, stride, cnt): return min(waits[idx + stride * k] for k in range(cnt))
    def qstep(i, n):
        k = i // 2
        mem = (x_ops(k & 1) if (i < 16 and i % 2 == 0) else []) + (load_ops(kx[i + LA]) if i != 19 else [])
        if KVPF and i < max(12, KVPF):
            mem += [f"buffer_load_dword v7, v{vPFK}, {sr(sPF)}, s{sPFO} offen {PF_FLAGS}",
                    f"s_cmp_lg_u32 s{sPF+2}, 0\n    s_cselect_b32 s{sTMP}, {16384 >> PFSH}, 0\n    s_add_u32 s{sPFO}, s{sPFO}, s{sTMP}\n    s_cmp_eq_u32 s{sPFO}, 196608\n    s_cselect_b32 s{sPFO}, 0, s{sPFO}"]
            if i == 3 and PFS: mem += [f"s_cmp_eq_u32 s{sCNT}, {4-PFS}\n    s_cselect_b32 s{sPF+2}, 196608, s{sPF+2}"]
        valu = {}
        if i == 19:
            for t in range(3): valu[9 + t] = [f"v_cvt_pk_bf16_f32 v{QF+16*t+8+j}, v{ACC+16*t+2*j}, v{ACC+16*t+2*j+1}" for j in range(8)]
        step("W", (k & 1, i & 1), kx[i + 1], n, mem, valu, x_reads(k + 1) if (i < 18 and i % 2 == 1) else None)
    cm("Q phase")
    if PRIO:
        e(f"s_cmp_eq_u32 s{sHALF}, 0"); e("s_cbranch_scc1 L_np"); e("s_setprio 1"); lab("L_np")
    for x in addr_ops("W"): e(x)
    e(f"s_waitcnt vmcnt({first})"); e("s_barrier")
    stamp()
    for x in x_reads(0): e(x)
    if WARM:
        e(f"s_bfe_u32 s{sTMP}, s2, 0x20003"); e(f"s_mul_i32 s{sTMP}, s{sTMP}, 40960")
        e(f"buffer_load_dword v7, v{vPFA}, {sr(sX)}, s{sTMP} offen")
        e(f"buffer_load_dword v{vPF}, v{vPFW}, {sr(sPF)}, 0 offen")
    if KVPF:
        e(f"s_and_b32 s{sTMP}, s{sQG}, 1"); e(f"s_cmp_eq_u32 s{sTMP}, 0")
        e(f"s_cselect_b32 s{sPF}, s{sK}, s{sV}"); e(f"s_cselect_b32 s{sPF+1}, s{sK+1}, s{sV+1}")
        e(f"s_mov_b32 s{sPF+2}, {196608 if PFS == 0 else 0}"); e(f"s_mov_b32 s{sPF+3}, 0x20000")
        e(f"s_lshr_b32 s{sTMP}, s{sQG}, 1"); e(f"s_lshl_b32 s{sTMP}, s{sTMP}, {13-PFSH}")
        e(f"s_add_u32 s{sPFO}, s{sVOFF}, {PFO}"); e(f"s_sub_u32 s{sCNT}, s{sPFO}, 196608"); e(f"s_cmp_ge_u32 s{sPFO}, 196608"); e(f"s_cselect_b32 s{sPFO}, s{sCNT}, s{sPFO}")
        e(f"v_lshrrev_b32 v{vPFK}, {PFSH}, v{vLANE}"); e(f"v_lshlrev_b32 v{vPFK}, 7, v{vPFK}"); e(f"v_add_u32 v{vPFK}, s{sTMP}, v{vPFK}")
    e("s_waitcnt lgkmcnt(2)")
    for m in range(6):
        for r in frag_reads("W", m): e(r)
    e(f"s_mov_b32 s{sCNT}, 3")
    lab("L_q")
    for k in range(4): qstep(k, same(k, 4, 3))
    e(f"s_sub_u32 s{sCNT}, s{sCNT}, 1"); e(f"s_cmp_lg_u32 s{sCNT}, 0"); e("s_cbranch_scc1 L_q")
    for i in range(12, 20): qstep(i, waits[i])
    e(f"s_mov_b32 s{sSOFF}, 0")
    cm("attention phase")
    if PROF: stamp()
    for f in range(6): e(f"ds_write_b128 v{vQW}, {vr(QF+16*(f//2)+8+4*(f&1),4)} offset:{1024*f}")
    for t in range(2):
        for j in range(8): e(f"v_cvt_pk_bf16_f32 v{QF+16*t+j}, v{ACC+48+16*t+2*j}, v{ACC+48+16*t+2*j+1}")
    e("s_waitcnt lgkmcnt(0)"); e("s_barrier")
    for f in range(6): e(f"ds_read_b128 {vr(QF+16*(f//2)+8+4*(f&1),4)}, v{vQR} offset:{1024*f}")
    for j in range(8): e(f"v_cvt_pk_bf16_f32 v{QF+32+j}, v{ACC+80+2*j}, v{ACC+80+2*j+1}")
    z = [f"v_mov_b32 v{ACC+r}, 0" for r in range(96)]
    for x in z[:24]: e(x)
    e("s_waitcnt lgkmcnt(0)")
    t24 = load_ops(kx[24]); t24[0] = f"s_add_u32 m0, s{sWOFS}, {4*SLOT}"
    step("K", 0, "K", waits[20], t24 + load_ops(kx[25]), spread(z[24:], 0, 11))
    step("K", 1, "V", waits[21], load_ops(kx[26]), spread(softA(SS[0], False) + softB(SS[0], P), 2, 11))
    def av(i, n, sidx, extra=[]):
        step("V", P, kx[i + 1], n, load_ops(kx[i + LA]) + extra, spread(softA(SS[sidx]), 2, 11), pre=["s_nop 0"])
    def ak(i, n, sidx):
        step("K", sidx, kx[i + 1], n, load_ops(kx[i + LA]), merge({2: [rescale_chk()]}, spread(softB(SS[1 - sidx], P), 0, 11)))
    e(f"s_mov_b32 s{sCNT}, 6")
    lab("L_a")
    av(22, same(22, 4, 6), 1); ak(23, same(23, 4, 6), 0); av(24, same(24, 4, 6), 0); ak(25, same(25, 4, 6), 1)
    e(f"s_sub_u32 s{sCNT}, s{sCNT}, 1"); e(f"s_cmp_lg_u32 s{sCNT}, 0"); e("s_cbranch_scc1 L_a")
    pf = [f"s_mul_i32 s{sTMP}, s{sB}, 61440", f"buffer_load_dword v{vPF}, v{vPFA}, {sr(sWO)}, s{sTMP} offen"] if WARM else []
    av(46, waits[46], 1, pf); ak(47, waits[47], 0); av(48, waits[48], 0); ak(49, waits[49], 1)
    step("V", P, "V", waits[50], load_ops(kx[55]), spread(softA(SS[1]) + softB(SS[1], SS[0]), 2, 11), pre=["s_nop 0"])
    step("V", SS[0], "O0", waits[51], load_ops(kx[56]), pre=[rescale_chk()])
    cm("normalise + exchange")
    if PROF: stamp()
    e(f"v_add_f32 v{vL0}, v{vL0}, v{vL1}")
    e(f"v_mov_b32 v{vL1}, v{vL0}")
    e("s_nop 1")
    e(f"v_permlane32_swap_b32 v{vL0}, v{vL1}")
    e("s_nop 1")
    e(f"v_add_f32 v{vL0}, v{vL0}, v{vL1}")
    e(f"v_rcp_f32 v{vMX}, v{vL0}")
    e("s_nop 7")
    e(f"v_mov_b32 v{vMX+1}, v{vMX}")
    for rho in range(3):
        for r in range(16): e(f"v_pk_mul_f32 {vr(ACC+32*rho+2*r,2)}, {vr(ACC+32*rho+2*r,2)}, {vr(vMX,2)}")
        for k in range(16): e(f"v_cvt_pk_bf16_f32 v{QF+16*rho+k}, v{ACC+32*rho+2*k}, v{ACC+32*rho+2*k+1}")
        if rho == 0:
            for f in range(4): e(f"ds_write_b128 v{vEX}, {vr(QF+4*f,4)} offset:{1024*f}")
    if DEBUG == 2: dump(QF, 12)
    for rho in range(3):
        if rho:
            for f in range(4): e(f"ds_write_b128 v{vEX}, {vr(QF+16*rho+4*f,4)} offset:{1024*f}")
        e("s_waitcnt lgkmcnt(0)"); e("s_barrier")
        for f in range(4):
            e(f"ds_read_b128 {vr(F+16*rho+4*f,4)}, v{vEXR} offset:{1024*f}")
            e(f"ds_read_b128 {vr(F+48+16*rho+4*f,4)}, v{vEXR} offset:{16384+1024*f}")
        e("s_waitcnt lgkmcnt(0)")
        if rho < 2: e("s_barrier")
    cm("O phase")
    if PROF: stamp()
    def ocv(tn, so):
        o = [f"v_cvt_pk_bf16_f32 v{OP+8*tn+k}, v{OA+16*tn+2*k}, v{OA+16*tn+2*k+1}" for k in range(8)]
        return o + [f"buffer_store_dwordx4 {vr(OP+8*tn+4*k,4)}, v{vST}, {sr(sWS)}, s{so} offen offset:{2048*tn+1024*k} {ST_FLAGS}".rstrip() for k in range(2)]
    e(f"s_mov_b32 s{sSTO2}, 0x100000")
    e(f"s_mov_b32 s{sCNT}, 5")
    lab("L_o")
    for rho in range(4):
        valu = {}; mem = load_ops(f"O{(rho+1)%4}")
        if rho == 0: valu = spread(ocv(1, sSTO2), 2, 5)
        if rho == 3:
            mem = [f"s_cmp_le_u32 s{sCNT}, 2", f"s_cselect_b32 s{sWO+2}, 0, s{sWO+2}"] + mem + ocv(0, sSTO)[8:] + [f"s_mov_b32 s{sSTO2}, s{sSTO}", f"s_add_u32 s{sSTO}, s{sSTO}, 8192"]
            valu = spread(ocv(0, sSTO)[:8], 8, 9)
        step("O", rho, "O", same(52 + rho, 4, 5), mem, valu)
    e(f"s_sub_u32 s{sCNT}, s{sCNT}, 1"); e(f"s_cmp_lg_u32 s{sCNT}, 0"); e("s_cbranch_scc1 L_o")
    e("s_nop 15")
    for x in ocv(1, sSTO2): e(x)
    stamp()
    if FUSE: fused_reduce()
    stamp_out()
    lab("L_end")
    e("s_endpgm")
    for x in RARE: e(x)
    return K1

def fused_reduce():
    cm("fused reduction over the 16 head-pair partials of (blk,b); this WG owns chunks 10hp..10hp+9")
    sG, sR, sLO, sHI = sCUR, sPREV, sSOFF, sSOFF2
    e(f"s_lshl_b32 s{sG}, s{sBLK}, 3"); e(f"s_add_u32 s{sG}, s{sG}, s{sB}")
    e(f"s_lshl_b32 s{sTMP}, s{sG}, 4"); srd(sK, sPTR+22, sTMP, 16)
    e(f"s_mul_i32 s{sR}, s{sHP}, 10"); e(f"s_add_u32 s{sR}, s{sR}, s{sW}")
    e(f"s_mul_i32 s{sTMP}, s{sG}, 2621440"); e(f"s_lshl_b32 s{sCNT}, s{sR}, 10"); e(f"s_add_u32 s{sTMP}, s{sTMP}, s{sCNT}")
    srd(sV, sPTR+24, sTMP, 15*163840+9216)
    e(f"s_mul_i32 s{sTMP}, s{sB}, {128*2560}"); e(f"s_mul_i32 s{sCNT}, s{sBLK}, 1280"); e(f"s_add_u32 s{sTMP}, s{sTMP}, s{sCNT}")
    srd(sWQ, sPTR+20, sTMP, 128*2560-1280)
    e(f"v_and_b32 v4, 31, v{vLANE}"); e("v_mul_u32_u24 v4, 2560, v4"); e(f"v_lshl_add_u32 v4, v{vHF}, 4, v4")
    e(f"s_mov_b32 s{sLO}, 0x3f80"); e(f"s_mov_b32 s{sHI}, 0x3f800000")
    for r in range(16, 32): e(f"v_mov_b32 v{r}, 0")
    e("v_mov_b32 v5, 0"); e("v_mov_b32 v6, 1")
    e("s_waitcnt vmcnt(0)"); e("s_barrier")
    e(f"s_cmp_lg_u32 s{sW}, 0"); e("s_cbranch_scc1 L_rj")
    e("s_mov_b64 exec, 1")
    e(f"buffer_atomic_add v6, v5, {sr(sK)}, 0 offen sc0 sc1")
    e("s_waitcnt vmcnt(0)"); e("v_add_u32 v6, 1, v6")
    lab("L_rp")
    e("v_cmp_gt_u32 vcc, 16, v6"); e("s_cbranch_vccz L_rq")
    e("s_sleep 2")
    e(f"buffer_load_dword v6, v5, {sr(sK)}, 0 offen sc1")
    e("s_waitcnt vmcnt(0)"); e("s_branch L_rp")
    lab("L_rq")
    e("s_mov_b64 exec, -1")
    lab("L_rj")
    e("s_barrier")
    def loads(c):
        for hp in range(16):
            e(f"s_mov_b32 s{sTMP}, {hp*163840+8192*c}")
            e(f"buffer_load_dwordx4 {vr(48+64*c+4*hp,4)}, v{vST}, {sr(sV)}, s{sTMP} offen sc1")
    def summ(c, extra):
        a = 16 + 8 * c
        e(f"s_mul_i32 s{sTMP}, s{sR}, 1639"); e(f"s_lshr_b32 s{sTMP}, s{sTMP}, 16")
        e(f"s_mul_i32 s{sCNT}, s{sTMP}, {81920-1280}"); e(f"s_lshl_b32 s{sTMP}, s{sR}, 5"); e(f"s_add_u32 s{sCNT}, s{sCNT}, s{sTMP}")
        for hp in range(16):
            e(f"s_waitcnt vmcnt({15-hp+extra})")
            for k in range(4):
                e(f"v_dot2c_f32_bf16 v{a+2*k}, s{sLO}, v{48+64*c+4*hp+k}"); e(f"v_dot2c_f32_bf16 v{a+2*k+1}, s{sHI}, v{48+64*c+4*hp+k}")
        e("s_nop 2")
        for k in range(4): e(f"v_cvt_pk_bf16_f32 v{32+4*c+k}, v{a+2*k}, v{a+2*k+1}")
        e(f"buffer_store_dwordx4 {vr(32+4*c,4)}, v4, {sr(sWQ)}, s{sCNT} offen")
    loads(0)
    e(f"s_cmp_lt_u32 s{sW}, 2"); e("s_cbranch_scc1 L_r2")
    summ(0, 0)
    e("s_branch L_r3")
    lab("L_r2")
    loads(1); summ(0, 16)
    e(f"s_add_u32 s{sR}, s{sR}, 8")
    summ(1, 1)
    lab("L_r3")

def dump(base, nfrag):
    e(f"s_lshl_b32 s{sTMP}, s2, 3"); e(f"s_add_u32 s{sTMP}, s{sTMP}, s{sW}")
    e(f"s_mul_i32 s{sTMP}, s{sTMP}, {nfrag*1024}")
    e(f"s_add_u32 s{sTMP}, s{sTMP}, 0x4000000")
    srd(sWS, sPTR+24, sTMP, nfrag*1024)
    for f in range(nfrag):
        e(f"s_mov_b32 s{sTMP}, {1024*f}")
        e(f"buffer_store_dwordx4 {vr(base+4*f,4)}, v{vST}, {sr(sWS)}, s{sTMP} offen")
    e("s_waitcnt vmcnt(0)")
    e("s_endpgm")

def kernel2():
    K2 = "reduce_kernel"
    L.append(f".globl {K2}\n.p2align 8\n.type {K2},@function\n{K2}:")
    RW = int(OPT.get('rw',4)); NPG = 160//RW; MG = -(-(1<<20)//NPG)
    assert all((x*MG)>>20 == x//NPG for x in range(2560//RW+16))
    e(f"s_cmp_ge_u32 s2, {0 if int(OPT.get('empty',0))&2 else 2560//RW}")
    e("s_cbranch_scc1 L_end2")
    e("s_load_dwordx2 s[4:5], s[0:1], 80")
    e("s_load_dwordx2 s[6:7], s[0:1], 96")
    e(f"s_mul_i32 s16, s2, {MG}"); e("s_lshr_b32 s16, s16, 20")
    e(f"s_mul_i32 s17, s16, {NPG}"); e("s_sub_u32 s17, s2, s17")
    e("v_lshrrev_b32 v1, 6, v0")
    e("s_nop 0")
    e("v_readfirstlane_b32 s18, v1")
    e(f"s_mul_i32 s17, s17, {RW}")
    e("s_nop 1")
    e("s_add_u32 s17, s17, s18")
    e("v_and_b32 v2, 63, v0")
    e("v_lshlrev_b32 v3, 4, v2")
    e("s_mul_i32 s19, s16, 2621440")
    e("s_lshl_b32 s20, s17, 10"); e("s_add_u32 s19, s19, s20")
    e("s_waitcnt lgkmcnt(0)")
    e("s_add_u32 s8, s6, s19"); e("s_addc_u32 s9, s7, 0"); e("s_and_b32 s9, s9, 0xffff")
    e(f"s_mov_b32 s10, {15*163840+1024}"); e("s_mov_b32 s11, 0x20000")
    e("s_mov_b32 s21, 0")
    for hp in range(16):
        e(f"buffer_load_dwordx4 {vr(16+4*hp,4)}, v3, s[8:11], s21 offen {RD_FLAGS}".rstrip())
        if hp < 15: e("s_add_u32 s21, s21, 163840")
    e("s_mov_b32 s12, s4"); e("s_and_b32 s13, s5, 0xffff"); e("s_mov_b32 s14, 2621440"); e("s_mov_b32 s15, 0x20000")
    e("s_mul_i32 s22, s17, 1639"); e("s_lshr_b32 s22, s22, 16")
    e("s_mul_i32 s23, s22, 40"); e("s_sub_u32 s23, s17, s23")
    e("s_and_b32 s24, s16, 7"); e("s_lshl_b32 s24, s24, 2"); e("s_add_u32 s24, s24, s22")
    e("s_mul_i32 s24, s24, 81920")
    e("s_lshr_b32 s25, s16, 3"); e("s_mul_i32 s25, s25, 1280"); e("s_add_u32 s24, s24, s25")
    e("s_lshl_b32 s23, s23, 5"); e("s_add_u32 s24, s24, s23")
    e("v_and_b32 v4, 31, v2"); e("v_mul_u32_u24 v4, 2560, v4")
    e("v_lshrrev_b32 v5, 5, v2"); e("v_lshl_add_u32 v4, v5, 4, v4")
    e("s_mov_b32 s26, 0xffff0000")
    for hp in range(16):
        e(f"s_waitcnt vmcnt({15-hp})")
        for k in range(4):
            src = 16 + 4 * hp + k
            if hp == 0:
                e(f"v_lshlrev_b32 v{8+2*k}, 16, v{src}"); e(f"v_and_b32 v{9+2*k}, s26, v{src}")
            else:
                if int(OPT.get("pk", 1)):
                    tp = 80 + 2 * k
                    e(f"v_lshlrev_b32 v{tp}, 16, v{src}"); e(f"v_and_b32 v{tp+1}, s26, v{src}")
                    if k == 3:
                        for kk in range(4): e(f"v_pk_add_f32 v[{8+2*kk}:{9+2*kk}], v[{8+2*kk}:{9+2*kk}], v[{80+2*kk}:{81+2*kk}]")
                else:
                    e(f"v_lshlrev_b32 v6, 16, v{src}"); e(f"v_and_b32 v7, s26, v{src}")
                    e(f"v_add_f32 v{8+2*k}, v{8+2*k}, v6"); e(f"v_add_f32 v{9+2*k}, v{9+2*k}, v7")
    for k in range(4): e(f"v_cvt_pk_bf16_f32 v{16+k}, v{8+2*k}, v{9+2*k}")
    e("buffer_store_dwordx4 v[16:19], v4, s[12:15], s24 offen")
    lab("L_end2")
    e("s_endpgm")
    return K2

import struct
def f32hex(x): return "%08x" % struct.unpack("<I", struct.pack("<f", x))[0]

def desc(name, nv, ns):
    return f""".amdhsa_kernel {name}
  .amdhsa_next_free_vgpr {nv}
  .amdhsa_next_free_sgpr {ns}
  .amdhsa_accum_offset {(nv+3)//4*4}
  .amdhsa_group_segment_fixed_size 0
  .amdhsa_kernarg_size 104
  .amdhsa_user_sgpr_count 2
  .amdhsa_user_sgpr_kernarg_segment_ptr 1
  .amdhsa_system_sgpr_workgroup_id_x 1
.end_amdhsa_kernel"""

head = open(f"cdna_kernels/{NAME}.s.ref").read().split("; Override launch")[0]
k1 = kernel1(); k2 = None if FUSE else kernel2()
txt = head
txt += f"; @launch kernel={k1} grid=(256,1,1) block=(512,1,1) lds={LDS_BYTES}\n"
if k2: txt += f"; @launch kernel={k2} grid=({2560//int(OPT.get('rw',4))},1,1) block=({64*int(OPT.get('rw',4))},1,1) lds=0\n"
txt += '.amdgcn_target "amdgcn-amd-amdhsa--gfx950"\n.text\n'
txt += "\n".join(L) + "\n"
txt += '.section .rodata,"a"\n.p2align 6\n' + desc(k1, 256, 100) + ("\n.p2align 6\n" + desc(k2, 88, 32) if k2 else "") + "\n"
open(OUT, "w").write(txt)
print("wrote", OUT, len(txt), "bytes", len(L), "lines")
```
